```python
import torch

def _softmax(x, axis=-1):
    return torch.softmax(x, dim=axis)
def _gelu(x):
    return torch.nn.functional.gelu(x, approximate="tanh")
def _silu(x):
    return torch.nn.functional.silu(x)
def _sigmoid(x):
    return torch.sigmoid(x)
def _layernorm(x, axis=-1, eps=1e-5):
    m = x.mean(dim=axis, keepdim=True)
    v = x.var(dim=axis, keepdim=True, unbiased=False)
    return (x - m) / torch.sqrt(v + eps)
def _scatter_add(tgt, idx, src, axis=0):
    return tgt.clone().index_add_(axis, idx, src)
def _segment_sum(src, seg, n):
    out = torch.zeros((n,) + src.shape[1:], dtype=src.dtype)
    return out.index_add_(0, seg, src)
def _pad(x, pw):
    flat = tuple(v for pair in reversed(pw) for v in pair)
    return torch.nn.functional.pad(x, flat)

kernel_name = 'parallel_sum__compressed_kv_cla__glu_gated_geglu__decode'

def setup_inputs():

    _w = (lambda a: (lambda t: t.to(torch.bfloat16) if t.is_floating_point() else t)(torch.as_tensor(a)))
    def _A_setup():
        B, H, Sq, Sk, D, M = 4, 32, 1, 4096, 128, 512
        Dc = 4 * D
        return {
            "x": _w((lambda *s: torch.randn(*s, dtype=torch.bfloat16) * 0.05)(B, Sq, M)),
            "c_kv": _w((lambda *s: torch.randn(*s, dtype=torch.bfloat16) * 0.8)(B, Sk, Dc)),
            "w_q": _w((lambda *s: torch.randn(*s, dtype=torch.bfloat16) * 1.6)(M, H, D) * (M ** -0.5)),
            "w_uk": _w((lambda *s: torch.randn(*s, dtype=torch.bfloat16) * 1.6)(Dc, H, D) * (Dc ** -0.5)),
            "w_uv": _w((lambda *s: torch.randn(*s, dtype=torch.bfloat16) * 0.8)(Dc, H, D) * (Dc ** -0.5)),
            "w_o": _w((lambda *s: torch.randn(*s, dtype=torch.bfloat16) * 0.8)(H, D, M) * ((H * D) ** -0.5)),
        }
    _A_in = _A_setup()

    def _B_setup():
        B, S, Dm, Df = 4, 1, 512, 1792
        return {
            "x": _w((lambda *s: torch.randn(*s, dtype=torch.bfloat16) * 0.05)(B, S, Dm)),
            "w_gate": _w((lambda *s: torch.randn(*s, dtype=torch.bfloat16) * 0.4)(Dm, Df) * (Dm ** -0.5)),
            "w_up": _w((lambda *s: torch.randn(*s, dtype=torch.bfloat16) * 0.4)(Dm, Df) * (Dm ** -0.5)),
            "w_down": _w((lambda *s: torch.randn(*s, dtype=torch.bfloat16) * 0.4)(Df, Dm) * (Df ** -0.5)),
        }
    _B_in = _B_setup()

    return {
        "A_x": _A_in["x"],
        "A_c_kv": _A_in["c_kv"],
        "A_w_q": _A_in["w_q"],
        "A_w_uk": _A_in["w_uk"],
        "A_w_uv": _A_in["w_uv"],
        "A_w_o": _A_in["w_o"],
        "B_x": _B_in["x"],
        "B_w_gate": _B_in["w_gate"],
        "B_w_up": _B_in["w_up"],
        "B_w_down": _B_in["w_down"],
    }

def reference(A_x, A_c_kv, A_w_q, A_w_uk, A_w_uv, A_w_o, B_x, B_w_gate, B_w_up, B_w_down):
    def _A_ref(x, c_kv, w_q, w_uk, w_uv, w_o):
        B, Sq, M = x.shape[0], x.shape[1], x.shape[2]
        Sk = c_kv.shape[1]
        H, D = w_q.shape[1], w_q.shape[2]
        q = torch.einsum("bqm,mhd->bhqd", x, w_q)
        k = torch.einsum("bkc,chd->bhkd", c_kv, w_uk)
        v = torch.einsum("bkc,chd->bhkd", c_kv, w_uv)
        scores = torch.einsum("bhqd,bhkd->bhqk", q, k) * (D ** -0.5)
        off = Sk - Sq
        qi = torch.arange(Sq)[:, None]
        kj = torch.arange(Sk)[None, :]
        cmask = kj <= (qi + off)
        scores = torch.where(cmask[None, None], scores, -1e9)
        p = _softmax(scores, axis=-1)
        ctx = torch.einsum("bhqk,bhkd->bhqd", p, v)
        return torch.einsum("bhqd,hdm->bqm", ctx, w_o)

    def _B_ref(x, w_gate, w_up, w_down):
        g = torch.einsum("bsd,df->bsf", x, w_gate)
        u = torch.einsum("bsd,df->bsf", x, w_up)
        h = _gelu(g) * u
        return torch.einsum("bsf,fd->bsd", h, w_down)

    x = A_x
    xn = _layernorm(x, axis=-1)
    return x + _A_ref(xn, A_c_kv, A_w_q, A_w_uk, A_w_uv, A_w_o) + _B_ref(xn, B_w_gate, B_w_up, B_w_down)
```

```python
import re

TRANS = ("v_exp_f32", "v_log_f32", "v_rcp_f32", "v_rsq_f32", "v_sqrt_f32", "v_sin_f32", "v_cos_f32")

def _regs(tok):
    tok = tok.strip().lstrip("-")
    if tok.startswith("abs(") or tok.startswith("|"):
        tok = tok.strip("|").replace("abs(", "").replace(")", "")
    m = re.fullmatch(r"([vs])(\d+)", tok)
    if m:
        return [(m.group(1), int(m.group(2)))]
    m = re.fullmatch(r"([vs])\[(\d+):(\d+)\]", tok)
    if m:
        return [(m.group(1), i) for i in range(int(m.group(2)), int(m.group(3)) + 1)]
    if tok == "vcc":
        return [("s", 106), ("s", 107)]
    if tok == "vcc_lo":
        return [("s", 106)]
    if tok == "vcc_hi":
        return [("s", 107)]
    if tok == "m0":
        return [("s", 124)]
    if tok == "exec":
        return [("s", 126), ("s", 127)]
    if tok == "exec_lo":
        return [("s", 126)]
    if tok == "exec_hi":
        return [("s", 127)]
    return []

class Ins:
    def __init__(self, text):
        self.text = text
        body = text.split(";")[0].strip()
        parts = body.split(None, 1)
        self.op = parts[0]
        rest = parts[1] if len(parts) > 1 else ""
        ops, cur, depth = [], "", 0
        for ch in rest:
            if ch == "[":
                depth += 1
            if ch == "]":
                depth -= 1
            if ch == "," and depth == 0:
                ops.append(cur); cur = ""
            else:
                cur += ch
        if cur.strip():
            ops.append(cur)
        ops = [o.strip() for o in ops]
        self.mods = ""
        if ops:
            last = ops[-1].split(None, 1)
            ops[-1] = last[0]
            self.mods = last[1] if len(last) > 1 else ""
        self.ops = ops
        op = self.op
        self.mfma = op.startswith("v_mfma")
        self.valu = op.startswith("v_") and not self.mfma
        self.salu = op.startswith("s_") and not op.startswith(("s_load", "s_memtime", "s_memrealtime", "s_waitcnt", "s_nop", "s_barrier", "s_sleep", "s_branch", "s_cbranch", "s_endpgm", "s_setprio"))
        self.vmem = op.startswith(("buffer_", "global_"))
        self.ds = op.startswith("ds_")
        self.dpp = "_dpp" in op
        self.trans = op.startswith(TRANS)
        self.lds_dma = self.vmem and (" lds" in (" " + self.mods) or "_lds_" in op)
        R = [_regs(o) for o in ops]
        flat = lambda l: [x for a in l for x in a]
        self.w, self.r = [], []
        self.store_data = []
        if self.mfma:
            self.w = R[0]; self.A, self.B, self.C = R[1], R[2], R[3]
            self.r = flat(R[1:])
            self.passes = 8 if "32x32" in op else 4
        elif op.startswith("v_permlane"):
            self.w = R[0] + R[1]; self.r = R[0] + R[1]
        elif self.valu:
            self.w = list(R[0]); self.r = flat(R[1:])
            if op.startswith(("v_fmac", "v_writelane")) or self.dpp:
                self.r += R[0]
            if op.startswith(("v_add_co", "v_sub_co", "v_addc_co")):
                self.w += R[1]; self.r = flat(R[2:])
            if op.startswith("v_cndmask") and len(ops) == 3:
                self.r += _regs("vcc")
        elif self.vmem:
            if "store" in op or "atomic" in op:
                self.r = flat(R)
                d = R[0] if op.startswith("buffer_") else R[1]
                if "x4" in op or "x3" in op:
                    self.store_data = d
            elif self.lds_dma:
                self.r = flat(R) + _regs("m0")
            else:
                self.w = R[0]; self.r = flat(R[1:])
        elif self.ds:
            if op.startswith(("ds_read", "ds_bpermute", "ds_permute", "ds_swizzle")) or "_rtn" in op:
                self.w = R[0]; self.r = flat(R[1:])
            else:
                self.r = flat(R)
        elif op.startswith(("s_cmp", "s_bitcmp")):
            self.r = flat(R)
        elif op.startswith("s_") and R:
            self.w = R[0]; self.r = flat(R[1:])
        self.ws, self.rs = set(self.w), set(self.r)

def need(prev, cur):
    n = 0
    if prev.valu:
        vw = {x for x in prev.ws if x[0] == "v"}
        sw = {x for x in prev.ws if x[0] == "s"}
        if cur.mfma and vw & cur.rs: n = max(n, 2)
        if cur.dpp and vw & cur.rs: n = max(n, 2)
        if cur.op.startswith("v_permlane") and vw & cur.rs: n = max(n, 2)
        if cur.op.startswith(("v_readlane", "v_readfirstlane")) and vw & cur.rs: n = max(n, 1)
        if sw & cur.rs:
            if cur.vmem: n = max(n, 5)
            elif cur.op.startswith(("v_readlane", "v_writelane")): n = max(n, 4)
            elif cur.valu or cur.mfma: n = max(n, 2)
            else: n = max(n, 1)
        if prev.trans and (cur.valu or cur.mfma or cur.vmem or cur.ds) and vw & cur.rs: n = max(n, 1)
    if prev.mfma:
        p8 = prev.passes == 8
        D = prev.ws
        if cur.mfma:
            if D & (set(cur.A) | set(cur.B)): n = max(n, 12 if p8 else 8)
            if D & set(cur.C):
                if not (list(prev.w) == list(cur.C) and prev.passes == cur.passes): n = max(n, 10 if p8 else 6)
            elif D & cur.ws: n = max(n, 12 if p8 else 8)
        else:
            if D & (cur.rs | cur.ws): n = max(n, 12 if p8 else 8)
            if cur.valu and set(prev.C) & cur.ws: n = max(n, 7 if p8 else 3)
    if prev.salu and ("s", 124) in prev.ws and cur.lds_dma: n = max(n, 1)
    if prev.store_data and set(prev.store_data) & cur.ws:
        n = max(n, 2 if cur.valu or cur.mfma else 1)
    return n

class Asm:
    def __init__(self):
        self.out = []
        self.hist = []
        self.nops = 0
    def raw(self, s):
        self.out.append(s)
    def label(self, name):
        self.out.append(name + ":")
    def fence(self, n=12):
        worst, dist = 0, 0
        for ins, st in reversed(self.hist):
            req = 0
            if ins.mfma: req = 12 if ins.passes == 8 else 8
            elif ins.valu: req = 5 if any(x[0] == "s" for x in ins.ws) else 2
            elif ins.store_data: req = 2
            elif ins.salu and ("s", 124) in ins.ws: req = 1
            worst = max(worst, req - dist)
            dist += st
            if dist > 20: break
        if worst > 0:
            self._nop(worst)
    def _nop(self, k):
        self.nops += k
        while k > 0:
            c = min(k, 16)
            self.out.append(f"    s_nop {c-1}")
            self.hist.append((Ins(f"s_nop {c-1}"), c))
            k -= c
    def __call__(self, text):
        for line in text.strip().split("\n"):
            line = line.strip()
            if not line or line.startswith(";"):
                continue
            if line.endswith(":"):
                self.label(line[:-1]); continue
            cur = Ins(line)
            if cur.op.startswith(("s_branch", "s_cbranch")):
                self.fence_branch()
            worst, dist = 0, 0
            for ins, st in reversed(self.hist):
                worst = max(worst, need(ins, cur) - dist)
                dist += st
                if dist > 20: break
            if worst > 0:
                self._nop(worst)
            self.out.append("    " + line)
            st = 1
            if cur.op == "s_nop":
                st = int(cur.ops[0], 0) + 1
            self.hist.append((cur, st))
    def fence_branch(self):
        worst, dist = 0, 1
        for ins, st in reversed(self.hist):
            req = 0
            if ins.mfma: req = 12 if ins.passes == 8 else 8
            elif ins.valu: req = 2
            elif ins.store_data: req = 2
            worst = max(worst, req - dist)
            dist += st
            if dist > 20: break
        if worst > 0:
            self._nop(worst)
    def text(self):
        return "\n".join(self.out) + "\n"
```

```python
import sys, math, struct
from emit import Asm

NAME = "parallel_sum__compressed_kv_cla__glu_gated_geglu__decode"

def f32(x):
    return "0x%08x" % struct.unpack("<I", struct.pack("<f", x))[0]

WS_Q   = 0x001000
WS_F   = WS_Q + 0x40000
WS_CX  = WS_F + 0x40000
WS_H1  = WS_CX + 0x40000
WS_H3  = WS_H1 + 0x40000
WS_H2  = WS_H3 + 0x80000
WS_DIAG = WS_H2 + 0x500000
WS_SIZE = WS_DIAG + 0x40000
RS = 1056
L_QA = 0
L_XN = L_QA + 16 * RS
L_PX = L_XN + 4 * RS
L_MX = L_PX + 4096
L_LX = L_MX + 256
L_ACTA = L_LX + 256
L_ACTF = L_ACTA + 4 * 272
L_CTX = L_ACTF + 4 * 144
L_FLG = L_CTX + 4 * 272
L_CKV = (L_FLG + 64 + 255) // 256 * 256
L_END = L_CKV + 128 * RS
assert L_END <= 163840

sX, sR, sH, sE, sQ4, sH2, sB, sSP, sHG, sFT = "s34", "s35", "s36", "s37", "s38", "s39", "s40", "s41", "s42", "s43"
sEP, sTAG, sF, sMSK, sPLO, sPHI = "s44", "s45", "s46", "s47", "s48", "s49"
SRD1, SRD2, SRDW, SRD3 = 52, 56, 60, 64
sO, sO2, sT, sT2, sN, sSTR, sW = "s68", "s69", "s70", "s71", "s72", "s73", "s74"
P_X, P_CKV, P_WQ, P_WUK, P_WUV, P_WO, P_WG, P_WU, P_WD, P_OUT, P_WS = 8, 10, 12, 14, 16, 18, 22, 24, 26, 28, 32
SPIN = 4096

def vr(b, n=4):
    return f"v[{b}:{b+n-1}]"

class K:
    def __init__(self, cfg):
        self.c = cfg
        self.a = Asm()
        self.uid = 0
        self.nst = 0
    def lab(self, s):
        self.uid += 1
        return f"L_{s}_{self.uid}"
    def srd(self, r, p, size):
        self.a(f"""s_mov_b32 s{r}, s{p}
        s_mov_b32 s{r+1}, s{p+1}
        s_mov_b32 s{r+2}, {size}
        s_mov_b32 s{r+3}, 0x20000""")
    def stamp(self, k):
        if self.c.get("diag"):
            self.a(f"s_memtime s[{78+2*k}:{79+2*k}]")
    def diag_end(self, w):
        if not self.c.get("diag"):
            return
        a = self.a
        a("s_waitcnt lgkmcnt(0)\ns_mov_b64 exec, -1")
        for k in range(13):
            a(f"v_writelane_b32 v8, s{76+2*k}, {k}")
        a(f"""s_lshl_b32 {sT}, s2, 3
        s_add_u32 {sT}, {sT}, s3
        s_lshl_b32 {sT}, {sT}, 6
        s_add_u32 {sT}, {sT}, {WS_DIAG}
        v_lshlrev_b32 v9, 2, v0
        s_mov_b64 exec, 0xffff
        buffer_store_dword v8, v9, s[{SRDW}:{SRDW+3}], {sT} offen""")
    def epoch_consts(self):
        self.a(f"""s_add_u32 {sEP}, {sEP}, 1
        s_and_b32 {sTAG}, {sEP}, 0xff
        s_mul_i32 {sF}, {sEP}, 0x3c6ef362
        s_or_b32 {sF}, {sF}, 1
        s_mov_b32 {sMSK}, 0xffffff00
        s_mov_b32 {sPLO}, 0x05040100
        s_mov_b32 {sPHI}, 0x07060302""")
    def flag_wait(self, idx, val, vt="v14"):
        L = self.lab("fw")
        self.a(f"""v_mov_b32 v15, {L_FLG}
        {L}:
        ds_read_b32 {vt}, v15 offset:{4*idx}
        s_waitcnt lgkmcnt(0)
        v_readfirstlane_b32 {sT}, {vt}
        s_cmp_lt_u32 {sT}, {val}
        s_cbranch_scc1 {L}""")
    def flag_add(self, idx):
        self.a(f"""v_mov_b32 v15, {L_FLG}
        v_mov_b32 v14, 1
        s_mov_b64 exec, 1
        ds_add_u32 v15, v14 offset:{4*idx}
        s_mov_b64 exec, -1""")
    def tile_loads(self, R, voff, srd, rows, nblk=2, blkrows=64):
        a = self.a
        cur = 0
        for be in range(nblk):
            for r in range(8):
                tgt = be * blkrows + rows[r]
                d = tgt - cur
                if d == 1:
                    a(f"s_add_u32 {sO}, {sO}, {sSTR}")
                elif d:
                    a(f"s_add_u32 {sO}, {sO}, {d * self.stride}")
                cur = tgt
                a(f"buffer_load_dwordx4 {vr(R + be*32 + r*4)}, {voff}, s[{srd}:{srd+3}], {sO} offen nt")
    def perm_op(self, dst, R, t):
        for p in range(4):
            lo, hi = R + (2*p)*4 + (t >> 1), R + (2*p+1)*4 + (t >> 1)
            self.a(f"v_perm_b32 v{dst+p}, v{hi}, v{lo}, {sPHI if t & 1 else sPLO}")
    def block_inline(self, R, AOP, ACC, TMP, first):
        self.perm_op(TMP, R, 0)
        for t in range(8):
            if t < 7:
                self.perm_op(TMP + ((t+1) & 3)*4, R, t+1)
            self.a(f"v_mfma_f32_16x16x32_bf16 {vr(ACC+4*t)}, {vr(AOP)}, {vr(TMP+(t&3)*4)}, {'0' if first else vr(ACC+4*t)}")
    def perm_all(self, P, R, nblk=2):
        for be in range(nblk):
            for t in range(8):
                self.perm_op(P + be*32 + t*4, R + be*32, t)
    def mfma_all(self, P, AOP, ACC, nblk=2):
        for be in range(nblk):
            for t in range(8):
                self.a(f"v_mfma_f32_16x16x32_bf16 {vr(ACC+4*t)}, {vr(AOP+4*be)}, {vr(P+be*32+t*4)}, {vr(ACC+4*t) if be else '0'}")
    def publish_f32(self, ACC, X, vtag, voff, soff):
        a = self.a
        for e in range(4):
            a(f"v_add_f32_dpp v{X+e}, v{ACC+4*e+1}, v{ACC+4*e} row_ror:8 row_mask:0xf bank_mask:0x3")
        for e in range(4):
            a(f"v_add_f32_dpp v{X+e}, v{ACC+16+4*e}, v{ACC+16+4*e+1} row_ror:8 row_mask:0xf bank_mask:0xc")
        for e in range(4):
            a(f"v_and_or_b32 v{X+e}, v{X+e}, {sMSK}, {vtag}")
        a(f"buffer_store_dwordx4 {vr(X)}, {voff}, s[{SRDW}:{SRDW+3}], {soff} offen sc1")
    def gather8_issue(self, G, voff, soff, soff2):
        for p in range(8):
            self.a(f"buffer_load_dwordx4 {vr(G+4*p)}, {voff}, s[{SRDW}:{SRDW+3}], {soff if p < 4 else soff2} offen offset:{(p&3)*1024} sc1")
    def tagcheck(self, G, n, vtag, vacc, waits=True):
        a = self.a
        for p in range(n):
            if waits:
                a(f"s_waitcnt vmcnt({n-1-p})")
            for e in range(4):
                if p == 0 and e == 0:
                    a(f"v_xor_b32 {vacc}, v{G}, {vtag}")
                else:
                    a(f"v_bitop3_b32 {vacc}, v{G+4*p+e}, {vacc}, {vtag} bitop3:0xde")
        a(f"""v_and_b32 {vacc}, 0xff, {vacc}
        v_cmp_ne_u32 vcc, 0, {vacc}""")
    def group_gather(self, G, vtag, voff, between=None):
        a = self.a
        L, D = self.lab("gg"), self.lab("ggd")
        a(f"s_add_u32 {sO2}, {sO}, 4096\ns_mov_b32 {sN}, {SPIN}")
        self.gather8_issue(G, voff, sO, sO2)
        if between:
            between()
        a(f"{L}:")
        self.tagcheck(G, 8, vtag, "v13")
        a(f"""s_cbranch_vccz {D}
        s_sub_u32 {sN}, {sN}, 1
        s_cbranch_scc1 {D}""")
        self.gather8_issue(G, voff, sO, sO2)
        a(f"s_branch {L}\n{D}:")
        for k in range(8):
            a(f"v_add_f32 v{G+k}, v{G+k}, v{G+8+k}")
        for k in range(8):
            a(f"v_add_f32 v{G+16+k}, v{G+16+k}, v{G+24+k}")
        for k in range(8):
            a(f"v_add_f32 v{G+k}, v{G+k}, v{G+16+k}")
    def wave_reduce(self, op, v, dst, full=True):
        a = self.a
        steps = (["row_ror:1", "row_ror:2"] if full else []) + ["row_ror:4", "row_ror:8"]
        for s in steps:
            a(f"{op}_dpp {v}, {v}, {v} {s} row_mask:0xf bank_mask:0xf")
        a(f"{op}_dpp {v}, {v}, {v} row_bcast:15 row_mask:0xa bank_mask:0xf")
        a(f"{op}_dpp {v}, {v}, {v} row_bcast:31 row_mask:0xc bank_mask:0xf")
        a(f"v_readlane_b32 {dst}, {v}, 63")

    def build(self):
        a, c = self.a, self.c
        a(f"""s_cmp_ge_u32 s2, 256
        s_cbranch_scc1 L_END
        s_load_dwordx16 s[8:23], s[0:1], 0
        s_load_dwordx8 s[24:31], s[0:1], 64
        s_load_dwordx2 s[32:33], s[0:1], 96""")
        if c.get("diag"):
            a("s_memrealtime s[76:77]")
        self.stamp(0)
        a(f"""v_readfirstlane_b32 s3, v0
        v_and_b32 v0, 63, v0
        s_and_b32 {sX}, s2, 7
        s_lshr_b32 {sR}, s2, 3
        s_lshr_b32 s3, s3, 6
        s_and_b32 {sT}, {sR}, 3
        s_lshl2_add_u32 {sH}, {sX}, {sT}
        s_lshl3_add_u32 {sFT}, {sT}, {sX}
        s_lshr_b32 {sE}, {sR}, 2
        s_lshr_b32 {sQ4}, {sE}, 1
        s_and_b32 {sH2}, {sE}, 1
        v_and_b32 v1, 15, v0
        v_lshrrev_b32 v2, 4, v0
        v_bfe_u32 v3, v0, 3, 1
        v_and_b32 v4, 7, v0
        v_lshlrev_b32 v5, 4, v0
        s_cmp_lg_u32 s3, 0
        s_cbranch_scc1 L_NOTA""")
        self.wave_A()
        a("L_NOTA:")
        a(f"""s_lshr_b32 {sB}, {sX}, 1
        s_and_b32 {sT}, {sX}, 1
        s_lshr_b32 {sSP}, {sR}, 1
        s_lshl4_add_u32 {sSP}, {sT}, {sSP}
        s_and_b32 {sHG}, {sR}, 1
        s_waitcnt lgkmcnt(0)
        s_load_dword {sEP}, s[{P_WS}:{P_WS+1}], 0""")
        self.srd(SRDW, P_WS, WS_SIZE)
        a("""s_cmp_ge_u32 s3, 3
        s_cbranch_scc1 L_WT
        s_cmp_eq_u32 s3, 1
        s_cbranch_scc1 L_WF""")
        self.wave_L()
        a("L_WF:")
        self.wave_F()
        a("L_WT:")
        self.wave_T()
        a("L_END:\ns_endpgm")
        a.raw("L_CODE_END:")

    def wave_A(self):
        a, c = self.a, self.c
        R, P, TMP, ACC, AOP, X, G = 64, 128, 192, 208, 240, 248, 16
        a(f"""s_getpc_b64 s[4:5]
        L_PC:
        s_lshl_b32 {sT}, {sR}, 9
        v_lshl_add_u32 v6, v0, 7, {sT}
        v_min_u32 v6, L_CODE_END-L_PC-4, v6
        s_mov_b64 exec, 15
        global_load_dword v255, v6, s[4:5]
        s_mov_b64 exec, -1
        v_lshl_add_u32 v6, v3, 2, v2
        v_lshlrev_b32 v7, 4, v4
        v_lshl_add_u32 v6, v6, 16, v7
        v_lshlrev_b32 v8, 16, v4
        v_lshl_add_u32 v8, v3, 6, v8
        v_lshl_add_u32 v8, v2, 4, v8
        s_mov_b32 {sSTR}, 8192
        s_lshl_b32 {sO}, {sQ4}, 20
        s_lshl_b32 {sT}, {sH}, 8
        s_lshl_b32 {sT2}, {sH2}, 7
        s_add_u32 {sO2}, {sT}, {sT2}
        s_add_u32 {sO}, {sO}, {sO2}
        s_mov_b32 m0, {L_XN}
        s_mov_b32 s{SRD3+2}, 4096
        s_mov_b32 s{SRD3+3}, 0x20000
        s_mov_b32 s{SRD1+2}, 0x400000
        s_mov_b32 s{SRD1+3}, 0x20000
        s_mov_b32 s{SRD2+2}, 0x400000
        s_mov_b32 s{SRD2+3}, 0x20000
        s_waitcnt lgkmcnt(0)
        s_mov_b64 s[{SRD3}:{SRD3+1}], s[{P_X}:{P_X+1}]
        s_mov_b64 s[{SRD1}:{SRD1+1}], s[{P_WQ}:{P_WQ+1}]
        s_mov_b64 s[{SRD2}:{SRD2+1}], s[{P_WUK}:{P_WUK+1}]""")
        for b in range(4):
            a(f"buffer_load_dwordx4 v5, s[{SRD3}:{SRD3+3}], 0 offen offset:{b*1024} lds")
            if b < 3:
                a("s_add_u32 m0, m0, 32")
        self.stride = 8192
        self.tile_loads(R, "v6", SRD1, list(range(8)))
        a(f"""s_lshl_b32 {sO}, {sE}, 19
        s_add_u32 {sO}, {sO}, {sT}""")
        for t in range(8):
            if t:
                a(f"s_add_u32 {sO}, {sO}, {sSTR}")
            for be in range(2):
                a(f"buffer_load_dwordx4 {vr(P+be*32+t*4)}, v8, s[{SRD2}:{SRD2+3}], {sO} offen offset:{be*128} nt")
        a(f"s_load_dword {sEP}, s[{P_WS}:{P_WS+1}], 0")
        self.stamp(1)
        a("s_waitcnt vmcnt(32)\ns_barrier")
        self.srd(SRDW, P_WS, WS_SIZE)
        a(f"""v_and_b32 v9, 1, v1
        v_lshlrev_b32 v9, 6, v9
        v_lshl_add_u32 v9, v2, 4, v9
        v_lshrrev_b32 v10, 2, v1
        v_mul_u32_u24 v11, {RS}, v10
        s_lshl_b32 {sT}, {sQ4}, 8
        v_add3_u32 v11, v11, v9, {sT}
        v_mul_u32_u24 v10, 272, v10
        v_add_u32 v10, v10, v9
        v_mul_u32_u24 v9, 272, v2
        v_lshl_add_u32 v9, v4, 4, v9
        v_lshl_add_u32 v9, v3, 3, v9
        s_waitcnt lgkmcnt(0)""")
        self.epoch_consts()
        a(f"v_mov_b32 v12, {sTAG}")
        self.flag_wait(0, 4)
        a(f"""ds_read_b128 {vr(AOP)}, v11 offset:{L_XN}
        ds_read_b128 {vr(AOP+4)}, v11 offset:{L_XN+128}
        s_waitcnt vmcnt(24) lgkmcnt(0)""")
        self.block_inline(R, AOP, ACC, TMP, True)
        a("s_waitcnt vmcnt(16)")
        self.stamp(2)
        self.block_inline(R+32, AOP+4, ACC, TMP, False)
        a(f"""s_lshl_b32 {sO}, {sH}, 13
        s_add_u32 {sO}, {sO}, {WS_Q}
        s_lshl_b32 {sT}, {sE}, 10
        s_add_u32 {sT}, {sT}, {sO}""")
        self.publish_f32(ACC, X, "v12", "v5", sT)
        a("s_waitcnt vmcnt(0)")
        self.stamp(3)
        self.group_gather(G, "v12", "v5")
        self.stamp(4)
        def to_operand():
            for k in range(4):
                a(f"v_cvt_pk_bf16_f32 v{G+k}, v{G+2*k}, v{G+2*k+1}")
            a(f"""ds_write_b64 v9, v[{G}:{G+1}] offset:{L_ACTA}
            ds_write_b64 v9, v[{G+2}:{G+3}] offset:{L_ACTA+128}
            ds_read_b128 {vr(AOP)}, v10 offset:{L_ACTA}
            ds_read_b128 {vr(AOP+4)}, v10 offset:{L_ACTA+128}
            s_waitcnt lgkmcnt(0)""")
        to_operand()
        self.mfma_all(P, AOP, ACC)
        a(f"""s_and_b32 {sT}, {sH}, 1
        s_mul_i32 {sT}, {sT}, 24576
        s_add_u32 {sO}, {sT}, {WS_H1}
        s_lshr_b32 {sT}, {sH}, 1
        s_lshl4_add_u32 {sT}, {sE}, {sT}
        s_lshl_b32 {sT2}, {sT}, 7
        s_lshl_b32 {sT}, {sT}, 6
        s_add_u32 {sT}, {sT}, 16384
        v_mov_b32 v13, {sT2}
        v_mov_b32 v14, {sT}
        v_mov_b32_dpp v13, v14 quad_perm:[0,1,2,3] row_mask:0xf bank_mask:0xc
        v_mul_u32_u24 v14, 49152, v2
        v_add3_u32 v13, v13, v14, v7
        v_mov_b32 v14, 0""")
        for t in range(8):
            a(f"v_add_f32_dpp v{G+t}, v{ACC+4*t+1}, v{ACC+4*t} row_ror:8 row_mask:0xf bank_mask:0xf")
        for k in range(4):
            a(f"v_cvt_pk_bf16_f32 v{X+k}, v{G+2*k}, v{G+2*k+1}")
        a(f"""v_add3_u32 v{G}, v{X}, v{X+1}, v{X+2}
        v_add_u32 v{G}, v{G}, v{X+3}
        v_mov_b32_dpp v{X+1}, v14 quad_perm:[0,1,2,3] row_mask:0xf bank_mask:0x4
        v_mov_b32_dpp v{X+2}, v14 quad_perm:[0,1,2,3] row_mask:0xf bank_mask:0x4
        v_add_u32_dpp v{G}, v{G}, v{G} row_shl:4 row_mask:0xf bank_mask:0x1
        v_sub_u32 v{G}, {sF}, v{G}
        v_mov_b32_dpp v{X+3}, v14 quad_perm:[0,1,2,3] row_mask:0xf bank_mask:0x4
        v_mov_b32_dpp v{X}, v{G} row_shr:8 row_mask:0xf bank_mask:0x4
        s_mov_b32 exec_lo, 0x0fff0fff
        s_mov_b32 exec_hi, 0x0fff0fff
        buffer_store_dwordx4 {vr(X)}, v13, s[{SRDW}:{SRDW+3}], {sO} offen sc1
        s_mov_b64 exec, -1""")
        self.stamp(5)
        a("s_waitcnt vmcnt(0)")
        self.flag_add(1)
        a(f"""s_mov_b64 s[{SRD1}:{SRD1+1}], s[{P_WUV}:{P_WUV+1}]
        s_mov_b64 s[{SRD2}:{SRD2+1}], s[{P_WO}:{P_WO+1}]
        v_lshl_add_u32 v8, v3, 3, v2
        v_lshl_add_u32 v8, v8, 15, v7
        s_lshl_b32 {sO}, {sQ4}, 20
        s_lshl_b32 {sT}, {sH}, 8
        s_lshl_b32 {sT2}, {sH2}, 7
        s_add_u32 {sO2}, {sT}, {sT2}
        s_add_u32 {sO}, {sO}, {sO2}
        s_waitcnt lgkmcnt(0)
        s_barrier""")
        if c.get("uv_delay", 1):
            a("s_sleep 4")
        self.tile_loads(R, "v8", SRD1, [0, 1, 2, 3, 16, 17, 18, 19])
        a("s_barrier\ns_barrier\ns_barrier")
        a("s_waitcnt vmcnt(0)")
        self.perm_all(P, R)
        a(f"""v_lshl_add_u32 v8, v3, 2, v2
        v_lshl_add_u32 v8, v8, 13, v7
        s_mov_b32 {sSTR}, 1024
        s_lshl_b32 {sO}, {sH}, 17
        s_lshl_b32 {sT}, {sE}, 7
        s_add_u32 {sO}, {sO}, {sT}
        s_barrier
        s_barrier""")
        self.stride = 1024
        self.tile_loads(R, "v8", SRD2, list(range(8)))
        a(f"""s_bfe_u32 {sT}, s2, 0x20001
        s_lshl_b32 {sT}, {sT}, 10
        s_bfe_u32 {sT2}, s2, 0x30003
        s_lshl_b32 {sT2}, {sT2}, 7
        s_add_u32 {sT}, {sT}, {sT2}
        s_and_b32 {sT2}, s2, 1
        s_lshl_b32 {sT2}, {sT2}, 6
        s_add_u32 {sW}, {sT}, {sT2}
        v_and_b32 v11, 3, v0
        v_lshlrev_b32 v11, 4, v11
        v_bfe_u32 v13, v0, 2, 1
        v_lshl_add_u32 v11, v13, 3, v11
        buffer_load_dwordx2 v[252:253], v11, s[{SRD3}:{SRD3+3}], {sW} offen
        s_barrier""")
        self.stamp(6)
        a(f"""ds_read_b128 {vr(AOP)}, v10 offset:{L_CTX}
        ds_read_b128 {vr(AOP+4)}, v10 offset:{L_CTX+128}
        s_lshl_b32 {sO}, {sH}, 13
        s_add_u32 {sO}, {sO}, {WS_CX}
        s_lshl_b32 {sT}, {sE}, 10
        s_add_u32 {sT}, {sT}, {sO}
        s_waitcnt lgkmcnt(0)""")
        self.mfma_all(P, AOP, ACC)
        self.publish_f32(ACC, X, "v12", "v5", sT)
        a("s_waitcnt vmcnt(0)")
        self.stamp(7)
        self.group_gather(G, "v12", "v5", between=lambda: self.perm_all(P, R))
        self.stamp(8)
        to_operand()
        self.mfma_all(P, AOP, ACC)
        self.h3_addr("v13", sH)
        self.publish_f32(ACC, X, "v12", "v13", sT)
        self.stamp(9)
        a(f"""s_cmp_ge_u32 s2, 64
        s_cbranch_scc1 L_ADONE
        s_lshl_b32 {sO}, s2, 13
        s_add_u32 {sO}, {sO}, {WS_H3}
        s_add_u32 {sO2}, {sO}, 4096
        s_mov_b32 {sN}, {SPIN}
        s_mov_b64 s[{SRD3}:{SRD3+1}], s[{P_OUT}:{P_OUT+1}]""")
        for e in range(4):
            a(f"v_mov_b32 v{G+28+e}, v12")
        a("s_waitcnt vmcnt(0)")
        self.stamp(10)
        L, D = self.lab("h3"), self.lab("h3d")
        a(f"{L}:")
        for p in range(8):
            if p == 7:
                a("s_mov_b32 exec_hi, 0")
            a(f"buffer_load_dwordx4 {vr(G+4*p)}, v5, s[{SRDW}:{SRDW+3}], {sO if p < 4 else sO2} offen offset:{(p&3)*1024} sc1")
        a("s_mov_b32 exec_hi, -1")
        self.tagcheck(G, 8, "v12", "v13")
        a(f"""s_cbranch_vccz {D}
        s_sub_u32 {sN}, {sN}, 1
        s_cbranch_scc0 {L}
        {D}:""")
        for k in range(16):
            a(f"v_add_f32 v{G+k}, v{G+k}, v{G+16+k}")
        for k in range(8):
            a(f"v_add_f32 v{G+k}, v{G+k}, v{G+8+k}")
        for k in range(4):
            a(f"v_add_f32 v{G+k}, v{G+k}, v{G+4+k}")
        for k in range(4):
            a(f"v_add_f32_dpp v{G+k}, v{G+k}, v{G+k} row_ror:8 row_mask:0xf bank_mask:0xf")
        for sw in ("v_permlane16_swap_b32", "v_permlane32_swap_b32"):
            for k in range(4):
                a(f"v_mov_b32 v{G+4+k}, v{G+k}")
            for k in range(4):
                a(f"{sw} v{G+k}, v{G+4+k}")
            for k in range(4):
                a(f"v_add_f32 v{G+k}, v{G+k}, v{G+4+k}")
        a(f"""v_lshlrev_b32 v{G+4}, 16, v252
        v_and_b32 v{G+5}, 0xffff0000, v252
        v_lshlrev_b32 v{G+6}, 16, v253
        v_and_b32 v{G+7}, 0xffff0000, v253""")
        for k in range(4):
            a(f"v_add_f32 v{G+k}, v{G+k}, v{G+4+k}")
        a(f"""v_cvt_pk_bf16_f32 v{G}, v{G}, v{G+1}
        v_cvt_pk_bf16_f32 v{G+1}, v{G+2}, v{G+3}
        s_mov_b64 exec, 0xff
        buffer_store_dwordx2 v[{G}:{G+1}], v11, s[{SRD3}:{SRD3+3}], {sW} offen
        s_cmp_lg_u32 s2, 0
        s_cbranch_scc1 L_ADONE
        s_mov_b64 exec, 1
        v_mov_b32 v13, {sEP}
        buffer_store_dword v13, v5, s[{SRDW}:{SRDW+3}], 0 offen
        L_ADONE:""")
        self.stamp(11)
        self.diag_end(0)
        a("s_endpgm")

    def h3_addr(self, v, slot):
        self.a(f"""v_bfe_u32 {v}, v0, 2, 1
        v_lshl_add_u32 {v}, v2, 1, {v}
        v_lshlrev_b32 {v}, 13, {v}
        v_lshl_add_u32 {v}, v3, 6, {v}
        v_and_b32 v14, 3, v0
        v_lshl_add_u32 {v}, v14, 4, {v}
        s_lshl_b32 {sT}, {sE}, 16
        s_lshl_b32 {sT2}, {slot}, 7
        s_add_u32 {sT}, {sT}, {sT2}
        s_add_u32 {sT}, {sT}, {WS_H3}""")

    def wave_L(self):
        a, c = self.a, self.c
        self.srd(SRD1, P_CKV, 0x1000000)
        a(f"""s_lshl_b32 {sO}, {sB}, 22
        s_lshl_b32 {sT}, {sSP}, 17
        s_add_u32 {sO}, {sO}, {sT}
        s_mov_b32 m0, {L_CKV}
        s_mov_b32 {sN}, 128
        s_barrier""")
        self.stamp(1)
        a(f"""L_CK:
        buffer_load_dwordx4 v5, s[{SRD1}:{SRD1+3}], {sO} offen nt lds
        s_add_u32 {sO}, {sO}, 1024
        s_add_u32 m0, m0, {RS}
        s_waitcnt vmcnt({c.get('pace', 28)})
        s_sub_u32 {sN}, {sN}, 1
        s_cmp_lg_u32 {sN}, 0
        s_cbranch_scc1 L_CK""")
        self.stamp(2)
        a("s_barrier\ns_waitcnt vmcnt(0)")
        self.stamp(3)
        a("s_barrier")
        self.diag_end(2)
        a("s_endpgm")

    def wave_F(self):
        a, c = self.a, self.c
        R, P, TMP, ACC, AOP, X, G = 64, 128, 192, 208, 240, 248, 16
        a(f"""v_mov_b32 v14, 0
        v_lshlrev_b32 v15, 2, v1
        ds_write_b32 v15, v14 offset:{L_FLG}
        s_waitcnt lgkmcnt(0)
        s_barrier""")
        a(f"""s_cmp_ge_u32 {sFT}, 28
        s_cbranch_scc1 L_END""")
        self.epoch_consts()
        a(f"""v_mov_b32 v12, {sTAG}
        s_cmp_eq_u32 {sH2}, 0
        s_cselect_b64 s[{SRD1}:{SRD1+1}], s[{P_WG}:{P_WG+1}], s[{P_WU}:{P_WU+1}]
        s_mov_b32 s{SRD1+2}, {512*3584}
        s_mov_b32 s{SRD1+3}, 0x20000""")
        self.srd(SRD2, P_WD, 1792*1024)
        a(f"""v_lshlrev_b32 v7, 4, v4
        v_lshl_add_u32 v6, v3, 2, v2
        v_lshl_add_u32 v8, v6, 13, v7
        v_mul_u32_u24 v6, {8*3584}, v6
        v_add_u32 v6, v6, v7
        v_and_b32 v9, 1, v1
        v_lshlrev_b32 v9, 6, v9
        v_lshl_add_u32 v9, v2, 4, v9
        v_lshrrev_b32 v10, 2, v1
        v_mul_u32_u24 v11, {RS}, v10
        s_lshl_b32 {sT}, {sQ4}, 8
        v_add3_u32 v11, v11, v9, {sT}
        v_mul_u32_u24 v10, 144, v10
        v_add_u32 v10, v10, v9
        v_mul_u32_u24 v9, 144, v2
        v_lshl_add_u32 v9, v4, 4, v9
        v_lshl_add_u32 v9, v3, 3, v9
        s_mov_b32 {sSTR}, 3584
        s_mul_i32 {sO}, {sQ4}, {128*3584}
        s_lshl_b32 {sT}, {sFT}, 7
        s_add_u32 {sO}, {sO}, {sT}
        s_barrier""")
        self.stride = 3584
        self.tile_loads(R, "v6", SRD1, list(range(8)))
        a(f"""ds_read_b128 {vr(AOP)}, v11 offset:{L_XN}
        ds_read_b128 {vr(AOP+4)}, v11 offset:{L_XN+128}
        s_barrier
        s_barrier
        s_barrier
        s_waitcnt vmcnt(8) lgkmcnt(0)""")
        self.block_inline(R, AOP, ACC, TMP, True)
        a("s_waitcnt vmcnt(0)")
        self.stamp(1)
        self.block_inline(R+32, AOP+4, ACC, TMP, False)
        a(f"""s_lshl_b32 {sW}, {sFT}, 13
        s_add_u32 {sW}, {sW}, {WS_F}
        s_lshl_b32 {sT}, {sE}, 10
        s_add_u32 {sT}, {sT}, {sW}""")
        self.publish_f32(ACC, X, "v12", "v5", sT)
        self.stamp(2)
        a(f"""s_mov_b32 {sSTR}, 1024
        s_lshl_b32 {sO}, {sFT}, 16
        s_lshl_b32 {sT}, {sE}, 7
        s_add_u32 {sO}, {sO}, {sT}
        s_barrier
        s_barrier""")
        self.stride = 1024
        self.tile_loads(R, "v8", SRD2, list(range(8)), nblk=1)
        a(f"s_mov_b32 {sO}, {sW}")
        def btw():
            a("s_barrier")
            a("s_waitcnt vmcnt(8)")
            self.perm_all(P, R, nblk=1)
        self.group_gather(G, "v12", "v5", between=btw)
        self.stamp(3)
        for k in range(4):
            a(f"v_cvt_pk_bf16_f32 v{G+8+k}, v{G+k}, v{G+4+k}")
        c1 = -2.0 * math.sqrt(2.0 / math.pi) * math.log2(math.e)
        a(f"s_mov_b32 {sT}, {f32(c1 * 0.044715)}\nv_mov_b32 v14, {f32(c1)}")
        for k in range(4):
            a(f"v_lshlrev_b32 v{G+k}, 16, v{G+8+k}\nv_and_b32 v{G+4+k}, 0xffff0000, v{G+8+k}")
        for k in range(4):
            a(f"v_mul_f32 v{G+8+k}, v{G+k}, v{G+k}")
        for k in range(4):
            a(f"v_fma_f32 v{G+8+k}, v{G+8+k}, {sT}, v14")
        for k in range(4):
            a(f"v_mul_f32 v{G+8+k}, v{G+8+k}, v{G+k}")
        for k in range(4):
            a(f"v_exp_f32 v{G+8+k}, v{G+8+k}")
        for k in range(4):
            a(f"v_add_f32 v{G+8+k}, 1.0, v{G+8+k}")
        for k in range(4):
            a(f"v_rcp_f32 v{G+8+k}, v{G+8+k}")
        for k in range(4):
            a(f"v_mul_f32 v{G+k}, v{G+k}, v{G+8+k}")
        a(f"""v_cvt_pk_bf16_f32 v{G+8}, v{G}, v{G+1}
        v_cvt_pk_bf16_f32 v{G+9}, v{G+2}, v{G+3}
        v_lshlrev_b32 v{G}, 16, v{G+8}
        v_and_b32 v{G+1}, 0xffff0000, v{G+8}
        v_lshlrev_b32 v{G+2}, 16, v{G+9}
        v_and_b32 v{G+3}, 0xffff0000, v{G+9}""")
        for k in range(4):
            a(f"v_mul_f32 v{G+k}, v{G+k}, v{G+4+k}")
        a(f"""v_cvt_pk_bf16_f32 v{G}, v{G}, v{G+1}
        v_cvt_pk_bf16_f32 v{G+1}, v{G+2}, v{G+3}
        ds_write_b64 v9, v[{G}:{G+1}] offset:{L_ACTF}
        ds_read_b128 {vr(AOP)}, v10 offset:{L_ACTF}
        s_add_u32 {sW}, {sFT}, 32""")
        self.h3_addr("v13", sW)
        a("s_waitcnt lgkmcnt(0)")
        self.mfma_all(P, AOP, ACC, nblk=1)
        self.publish_f32(ACC, X, "v12", "v13", sT)
        self.stamp(4)
        self.diag_end(1)
        a("s_endpgm")

    def wave_T(self):
        a, c = self.a, self.c
        a(f"""s_sub_u32 {sW}, s3, 3
        s_mul_i32 {sT}, {sW}, {RS}
        v_add_u32 v6, {sT}, v5
        s_barrier""")
        a(f"""ds_read_b128 v[16:19], v6 offset:{L_XN}
        s_waitcnt lgkmcnt(0)""")
        for k in range(4):
            a(f"v_lshlrev_b32 v{20+2*k}, 16, v{16+k}\nv_and_b32 v{21+2*k}, 0xffff0000, v{16+k}")
        a("""v_add_f32 v28, v20, v21
        v_add_f32 v29, v22, v23
        v_add_f32 v30, v24, v25
        v_add_f32 v31, v26, v27
        v_add_f32 v28, v28, v29
        v_add_f32 v30, v30, v31
        v_add_f32 v28, v28, v30""")
        self.wave_reduce("v_add_f32", "v28", sT)
        a(f"v_mov_b32 v29, {f32(1.0/512)}\nv_mul_f32 v29, {sT}, v29")
        a("v_sub_f32 v30, v20, v29\nv_mul_f32 v28, v30, v30")
        for k in range(1, 8):
            a(f"v_sub_f32 v30, v{20+k}, v29\nv_fmac_f32 v28, v30, v30")
        self.wave_reduce("v_add_f32", "v28", sT)
        a(f"""v_mov_b32 v30, {f32(1.0/512)}
        v_mul_f32 v30, {sT}, v30
        v_cvt_pk_bf16_f32 v29, v29, v30
        v_and_b32 v30, 0xffff0000, v29
        v_lshlrev_b32 v29, 16, v29
        v_add_f32 v30, {f32(1e-5)}, v30
        v_cvt_pk_bf16_f32 v30, v30, v30
        v_and_b32 v30, 0xffff0000, v30
        v_sqrt_f32 v30, v30
        v_cvt_pk_bf16_f32 v30, v30, v30
        v_and_b32 v30, 0xffff0000, v30
        v_rcp_f32 v30, v30""")
        for k in range(8):
            a(f"v_sub_f32 v{20+k}, v{20+k}, v29")
        for k in range(4):
            a(f"v_cvt_pk_bf16_f32 v{16+k}, v{20+2*k}, v{21+2*k}")
        for k in range(4):
            a(f"v_lshlrev_b32 v{20+2*k}, 16, v{16+k}\nv_and_b32 v{21+2*k}, 0xffff0000, v{16+k}")
        for k in range(8):
            a(f"v_mul_f32 v{20+k}, v{20+k}, v30")
        for k in range(4):
            a(f"v_cvt_pk_bf16_f32 v{16+k}, v{20+2*k}, v{21+2*k}")
        a(f"ds_write_b128 v6, v[16:19] offset:{L_XN}")
        self.flag_add(0)
        self.stamp(1)
        self.epoch_consts()
        a(f"""s_lshl1_add_u32 {sT}, {sB}, {sHG}
        s_mul_i32 {sT}, {sT}, 24576
        s_add_u32 {sT}, {sT}, {WS_H1}
        s_lshl_b32 {sO}, {sW}, 12
        s_add_u32 {sO}, {sO}, {sT}
        s_lshl_b32 {sO2}, {sW}, 11
        s_add_u32 {sO2}, {sO2}, {sT}
        s_add_u32 {sO2}, {sO2}, 16384
        s_lshl_b32 s75, {sF}, 7
        v_lshrrev_b32 v6, 3, v0
        v_mul_u32_u24 v6, {RS}, v6
        v_lshl_add_u32 v6, v4, 4, v6
        s_lshl_b32 {sT}, {sW}, 8
        v_add_u32 v6, {sT}, v6
        v_mul_u32_u24 v7, {RS}, v1
        v_lshl_add_u32 v7, v2, 4, v7
        s_mov_b32 {sN}, {SPIN}""")
        self.flag_wait(1, 1)
        self.stamp(2)
        G = 16
        L, D = self.lab("h1"), self.lab("h1d")
        a(f"{L}:")
        for n in range(4):
            a(f"buffer_load_dwordx4 {vr(G+4*n)}, v5, s[{SRDW}:{SRDW+3}], {sO} offen offset:{n*1024} sc1")
        for n in range(2):
            a(f"buffer_load_dwordx4 {vr(G+16+4*n)}, v5, s[{SRDW}:{SRDW+3}], {sO2} offen offset:{n*1024} sc1")
        self.sumcheck(G, 6, "v13", post=lambda n: a(f"ds_write_b128 v6, {vr(G+4*n)} offset:{L_QA + (n&1)*8*RS + (n>>1)*128}") if n < 4 else None)
        a(f"""s_cmp_eq_u32 {sT}, s75
        s_cbranch_scc1 {D}
        s_waitcnt lgkmcnt(0)
        s_sub_u32 {sN}, {sN}, 1
        s_cbranch_scc0 {L}
        {D}:""")
        self.stamp(3)
        a("s_waitcnt lgkmcnt(0)\ns_barrier")
        QA = 64
        for kk in range(16):
            a(f"ds_read_b128 {vr(QA+4*kk)}, v7 offset:{L_QA + kk*64}")
            if kk == 11:
                a("s_waitcnt lgkmcnt(4)")
        a(f"""s_mul_i32 {sT}, {sW}, {32*RS}
        s_add_u32 {sT}, {sT}, {L_CKV}
        v_add_u32 v8, {sT}, v7
        v_lshrrev_b32 v9, 2, v0
        v_mul_u32_u24 v9, {RS}, v9
        v_and_b32 v10, 3, v0
        v_lshl_add_u32 v9, v10, 3, v9
        s_lshl_b32 {sT}, {sW}, 8
        s_add_u32 {sT}, {sT}, {L_CKV}
        v_add_u32 v9, {sT}, v9
        v_add_u32 v10, {64*RS}, v9
        v_lshlrev_b32 v11, 4, v1
        v_add_u32 v11, {L_MX}, v11
        s_lshl_b32 {sT}, {sW}, 2
        v_add_u32 v12, {sT}, v11
        v_add_u32 v6, {L_PX}, v5
        s_lshl_b32 {sT}, {sW}, 10
        v_add_u32 v7, {sT}, v6
        s_mov_b32 s50, {f32(128 ** -0.5 * math.log2(math.e))}
        s_waitcnt lgkmcnt(0)
        s_barrier""")
        self.stamp(4)
        AB, SA, V = 32, 16, 128
        steps = [(u, kk) for kk in range(16) for u in range(2)]
        DIST = 6
        def rdS(i):
            u, kk = steps[i]
            a(f"ds_read_b128 {vr(AB+4*(i&7))}, v8 offset:{u*16*RS + kk*64}")
        pv = [(tp, ks, tt) for tp in range(4) for ks in range(4) for tt in range(2)]
        self.vnext = 0
        def rdV(cnt):
            for _ in range(cnt):
                if self.vnext >= 64: return
                i, u = self.vnext >> 1, self.vnext & 1
                tp, ks, tt = pv[i]
                off = (ks & 1) * 32 * RS + u * 16 * RS + (2*tp + tt) * 32
                a(f"ds_read_b64_tr_b16 v[{V+4*i+2*u}:{V+4*i+2*u+1}], {'v10' if ks >= 2 else 'v9'} offset:{off}")
                self.vnext += 1
        for i in range(DIST):
            rdS(i)
        extra = 0
        for i in range(32):
            u, kk = steps[i]
            out = min(DIST - 1, 31 - i) + extra
            a(f"s_waitcnt lgkmcnt({out})")
            a(f"v_mfma_f32_16x16x32_bf16 {vr(SA+4*u)}, {vr(AB+4*(i&7))}, {vr(QA+4*kk)}, {vr(SA+4*u) if kk else '0'}")
            if i + DIST < 32:
                rdS(i + DIST)
            else:
                rdV(2); extra += 2
        a(f"""v_max3_f32 v24, v{SA}, v{SA+1}, v{SA+2}
        v_max3_f32 v25, v{SA+4}, v{SA+5}, v{SA+6}
        v_max3_f32 v24, v24, v{SA+3}, v{SA+7}
        v_max_f32 v24, v24, v25
        v_mov_b32 v25, v24
        v_permlane16_swap_b32 v24, v25
        v_max_f32 v24, v24, v25
        v_mov_b32 v25, v24
        v_permlane32_swap_b32 v24, v25
        v_max_f32 v24, v24, v25
        ds_write_b32 v12, v24""")
        nb = c.get("vbatch", 12)
        rdV(nb)
        a(f"s_waitcnt lgkmcnt({nb})\ns_barrier")
        a("ds_read_b128 v[24:27], v11")
        rdV(nb)
        a(f"""s_waitcnt lgkmcnt({nb})
        v_max3_f32 v24, v24, v25, v26
        v_max_f32 v24, v24, v27
        v_mul_f32 v57, s50, v24""")
        for k in range(8):
            a(f"v_fma_f32 v{SA+k}, v{SA+k}, s50, -v57")
        for k in range(8):
            a(f"v_exp_f32 v{SA+k}, v{SA+k}")
        for k in range(4):
            a(f"v_cvt_pk_bf16_f32 v{28+k}, v{SA+2*k}, v{SA+2*k+1}")
        a(f"""ds_write_b128 v7, v[28:31]
        v_add_f32 v24, v{SA}, v{SA+1}
        v_add_f32 v25, v{SA+2}, v{SA+3}
        v_add_f32 v26, v{SA+4}, v{SA+5}
        v_add_f32 v27, v{SA+6}, v{SA+7}
        v_add_f32 v24, v24, v25
        v_add_f32 v26, v26, v27
        v_add_f32 v24, v24, v26
        v_mov_b32 v25, v24
        v_permlane16_swap_b32 v24, v25
        v_add_f32 v24, v24, v25
        v_mov_b32 v25, v24
        v_permlane32_swap_b32 v24, v25
        v_add_f32 v24, v24, v25
        ds_write_b32 v12, v24 offset:256
        s_waitcnt lgkmcnt(0)
        s_barrier""")
        PF = 64
        for ks in range(4):
            a(f"ds_read_b128 {vr(PF+4*ks)}, v6 offset:{ks*1024}")
        a("ds_read_b128 v[24:27], v11 offset:256")
        have = self.vnext
        pre = min(10, 64 - self.vnext)
        rdV(pre)
        a(f"""v_mul_u32_u24 v12, 327680, v1
        v_lshl_add_u32 v12, v2, 4, v12
        s_lshl2_add_u32 {sT}, {sHG}, {sW}
        s_lshl2_add_u32 {sT}, {sT}, {sB}
        s_mul_i32 {sT}, {sT}, 10240
        s_add_u32 {sT}, {sT}, {WS_H2}
        s_lshl_b32 {sO}, {sSP}, 8
        s_add_u32 {sO}, {sO}, {sT}
        s_lshl_b32 {sO2}, {sSP}, 6
        s_add_u32 {sO2}, {sO2}, {sT}
        s_add_u32 {sO2}, {sO2}, 8192
        s_waitcnt lgkmcnt({pre})
        v_add_f32 v24, v24, v25
        v_add_f32 v26, v26, v27
        v_add_f32 v58, v24, v26
        v_mov_b32 v59, 0
        v_add_u32 v56, v57, v58""")
        self.stamp(5)
        OA, OG = 32, 48
        def epi(tp):
            A0, g = OA + (tp & 1) * 8, OG + (tp & 1) * 4
            ops = [f"v_cvt_pk_bf16_f32 v{g+k}, v{A0+2*k}, v{A0+2*k+1}" for k in range(4)]
            ops += [f"buffer_store_dwordx4 {vr(g)}, v12, s[{SRDW}:{SRDW+3}], {sO} offen offset:{tp*64} sc1",
                    f"v_add3_u32 v56, v56, v{g}, v{g+1}", f"v_add3_u32 v56, v56, v{g+2}, v{g+3}"]
            return ops
        pend = []
        for i in range(32):
            tp, ks, tt = pv[i]
            if 2*i + 2 > have:
                a(f"s_waitcnt lgkmcnt({min(15, self.vnext - (2*i + 2))})")
            A0 = OA + (tp & 1) * 8 + tt * 4
            a(f"v_mfma_f32_16x16x32_bf16 {vr(A0)}, {vr(V+4*i)}, {vr(PF+4*ks)}, {vr(A0) if ks else '0'}")
            if self.vnext - max(have, 2*i + 2) < 12:
                rdV(2)
            if (i & 7) == 3 and tp:
                pend = epi(tp - 1)
            for _ in range(2):
                if pend: a(pend.pop(0))
        assert self.vnext == 64 and not pend
        for o in epi(3):
            a(o)
        a(f"""v_sub_u32 v56, {sF}, v56
        buffer_store_dwordx4 v[56:59], v12, s[{SRDW}:{SRDW+3}], {sO2} offen sc1""")
        self.stamp(6)
        a(f"""s_lshl2_add_u32 {sT}, {sH}, {sQ4}
        s_lshl2_add_u32 {sT}, {sT}, {sW}
        s_mul_i32 {sT}, {sT}, 10240
        s_add_u32 {sO}, {sT}, {WS_H2}
        s_add_u32 {sO2}, {sO}, 8192
        v_lshlrev_b32 v6, 4, v1
        v_lshl_add_u32 v7, v2, 9, v6
        v_lshl_add_u32 v6, v2, 11, v6
        s_mul_i32 {sT}, {sW}, 272
        s_add_u32 {sT}, {sT}, {L_CTX}
        v_add_u32 v8, {sT}, v5
        s_mov_b32 {sN}, {SPIN}
        s_waitcnt vmcnt(0)
        s_barrier""")
        self.stamp(7)
        G, TMP, ACC = 64, 104, 128
        def issue():
            for u in range(2):
                a(f"buffer_load_dwordx4 {vr(G+4*u)}, v7, s[{SRDW}:{SRDW+3}], {sO2} offen offset:{u*256} sc1")
            for n in range(8):
                a(f"buffer_load_dwordx4 {vr(G+8+4*n)}, v6, s[{SRDW}:{SRDW+3}], {sO} offen offset:{n*256} sc1")
        issue()
        a("s_barrier")
        L, D = self.lab("h2"), self.lab("h2d")
        a(f"{L}:")
        self.sumcheck(G, 10, "v13")
        a(f"""s_cmp_eq_u32 {sT}, s75
        s_cbranch_scc1 {D}
        s_sub_u32 {sN}, {sN}, 1
        s_cbranch_scc1 {D}""")
        issue()
        a(f"s_branch {L}\n{D}:")
        self.stamp(8)
        a(f"v_max_f32 v16, v{G+1}, v{G+5}")
        self.wave_reduce("v_max_f32", "v16", sT, full=False)
        a(f"""v_subrev_f32 v16, {sT}, v{G+1}
        v_subrev_f32 v17, {sT}, v{G+5}
        v_exp_f32 v16, v16
        v_exp_f32 v17, v17
        v_cvt_pk_bf16_f32 v18, v16, v17
        v_mov_b32_dpp v19, v18 row_shl:4 row_mask:0xf bank_mask:0x5
        v_lshlrev_b32 v16, 16, v18
        v_and_b32 v17, 0xffff0000, v18
        v_perm_b32 v24, v19, v18, {sPLO}
        v_perm_b32 v25, v19, v18, {sPHI}
        v_mul_f32 v16, v16, v{G+2}
        v_fmac_f32 v16, v17, v{G+6}
        v_mov_b32_dpp v20, v24 row_newbcast:0 row_mask:0xf bank_mask:0xf
        v_mov_b32_dpp v21, v24 row_newbcast:8 row_mask:0xf bank_mask:0xf
        v_mov_b32_dpp v22, v25 row_newbcast:0 row_mask:0xf bank_mask:0xf
        v_mov_b32_dpp v23, v25 row_newbcast:8 row_mask:0xf bank_mask:0xf""")
        self.block_inline(G+8, 20, ACC, TMP, True)
        self.wave_reduce("v_add_f32", "v16", sT, full=False)
        a(f"v_rcp_f32 v16, {sT}")
        for t in range(8):
            a(f"v_mul_f32 v{24+t}, v16, v{ACC+4*t}")
        for k in range(4):
            a(f"v_cvt_pk_bf16_f32 v{20+k}, v{24+2*k}, v{25+2*k}")
        a(f"""s_mov_b64 exec, 0xffff
        ds_write_b128 v8, v[20:23]
        s_waitcnt lgkmcnt(0)
        s_barrier""")
        self.stamp(9)
        self.diag_end(3)

    def sumcheck(self, G, n, vacc, post=None, pre=None):
        a = self.a
        for p in range(n):
            a(f"s_waitcnt vmcnt({n-1-p})")
            if post: post(p)
            if p == 0:
                a(f"v_add_u32 {vacc}, v{G}, v{G+1}")
            else:
                a(f"v_add3_u32 {vacc}, {vacc}, v{G+4*p}, v{G+4*p+1}")
            a(f"v_add3_u32 {vacc}, {vacc}, v{G+4*p+2}, v{G+4*p+3}")
        self.wave_reduce("v_add_u32", vacc, sT)

HEADER = open("cdna_kernels/%s.s.ref" % NAME).read().split("; Override launch")[0]

def generate(cfg):
    k = K(cfg)
    k.build()
    body = k.a.text()
    return f"""{HEADER}; Override launch geometry by editing the next line (default: block=256,
; @launch grid=(256,1,1) block=(448,1,1) lds={L_END}
.amdgcn_target "amdgcn-amd-amdhsa--gfx950"
.text
.globl {NAME}_kernel
.p2align 8
.type {NAME}_kernel,@function
{NAME}_kernel:
{body}.section .rodata,"a"
.p2align 6
.amdhsa_kernel {NAME}_kernel
  .amdhsa_next_free_vgpr 256
  .amdhsa_next_free_sgpr 102
  .amdhsa_accum_offset 256
  .amdhsa_group_segment_fixed_size 0
  .amdhsa_kernarg_size 104
  .amdhsa_user_sgpr_count 2
  .amdhsa_user_sgpr_kernarg_segment_ptr 1
  .amdhsa_system_sgpr_workgroup_id_x 1
.end_amdhsa_kernel
"""

if __name__ == "__main__":
    out = sys.argv[1]
    cfg = {}
    for kv in sys.argv[2:]:
        k, v = kv.split("=")
        cfg[k] = int(v)
    open(out, "w").write(generate(cfg))
```

```python
import sys, math, struct
from emit import Asm

NAME = "parallel_sum__compressed_kv_cla__glu_gated_geglu__decode"

def f32(x):
    return "0x%08x" % struct.unpack("<I", struct.pack("<f", x))[0]

WS_Q   = 0x001000
WS_F   = WS_Q + 0x40000
WS_CX  = WS_F + 0x40000
WS_H1  = WS_CX + 0x40000
WS_H3  = WS_H1 + 0x40000
WS_H2  = WS_H3 + 0x80000
WS_DIAG = WS_H2 + 0x500000
WS_SIZE = WS_DIAG + 0x40000
RS = 1056
L_QA = 0
L_XN = L_QA + 16 * RS
L_PX = L_XN + 4 * RS
L_MX = L_PX + 4096
L_LX = L_MX + 256
L_ACTA = L_LX + 256
L_ACTF = L_ACTA + 4 * 272
L_CTX = L_ACTF + 4 * 144
L_FLG = L_CTX + 4 * 272
L_CKV = (L_FLG + 64 + 255) // 256 * 256
L_END = L_CKV + 128 * RS
assert L_END <= 163840

sX, sR, sH, sE, sQ4, sH2, sB, sSP, sHG, sFT = "s34", "s35", "s36", "s37", "s38", "s39", "s40", "s41", "s42", "s43"
sEP, sTAG, sF, sMSK, sPLO, sPHI = "s44", "s45", "s46", "s47", "s48", "s49"
SRD1, SRD2, SRDW, SRD3 = 52, 56, 60, 64
sO, sO2, sT, sT2, sN, sSTR, sW = "s68", "s69", "s70", "s71", "s72", "s73", "s74"
P_X, P_CKV, P_WQ, P_WUK, P_WUV, P_WO, P_WG, P_WU, P_WD, P_OUT, P_WS = 8, 10, 12, 14, 16, 18, 22, 24, 26, 28, 32
SPIN = 4096

def vr(b, n=4):
    return f"v[{b}:{b+n-1}]"

class K:
    def __init__(self, cfg):
        self.c = cfg
        self.a = Asm()
        self.uid = 0
        self.nst = 0
    def lab(self, s):
        self.uid += 1
        return f"L_{s}_{self.uid}"
    def srd(self, r, p, size):
        self.a(f"""s_mov_b32 s{r}, s{p}
        s_mov_b32 s{r+1}, s{p+1}
        s_mov_b32 s{r+2}, {size}
        s_mov_b32 s{r+3}, 0x20000""")
    def stamp(self, k):
        if self.c.get("diag"):
            self.a(f"s_memtime s[{78+2*k}:{79+2*k}]")
    def diag_end(self, w):
        if not self.c.get("diag"):
            return
        a = self.a
        a("s_waitcnt lgkmcnt(0)\ns_mov_b64 exec, -1")
        for k in range(13):
            a(f"v_writelane_b32 v8, s{76+2*k}, {k}")
        a(f"""s_lshl_b32 {sT}, s2, 3
        s_add_u32 {sT}, {sT}, s3
        s_lshl_b32 {sT}, {sT}, 6
        s_add_u32 {sT}, {sT}, {WS_DIAG}
        v_lshlrev_b32 v9, 2, v0
        s_mov_b64 exec, 0xffff
        buffer_store_dword v8, v9, s[{SRDW}:{SRDW+3}], {sT} offen""")
        if self.c.get("dbg") is not None and w == 0:
            L = self.lab("dbg")
            self.srd(SRD1, 30, 256)
            a(f"""s_cmp_lg_u32 s2, {self.c['dbg']}
            s_cbranch_scc1 {L}
            v_subrev_u32 v8, s78, v8
            buffer_store_dword v8, v9, s[{SRD1}:{SRD1+3}], 0 offen
            {L}:""")
    def epoch_consts(self):
        self.a(f"""s_add_u32 {sEP}, {sEP}, 1
        s_and_b32 {sTAG}, {sEP}, 0xff
        s_mul_i32 {sF}, {sEP}, 0x3c6ef362
        s_or_b32 {sF}, {sF}, 1
        s_mov_b32 {sMSK}, 0xffffff00
        s_mov_b32 {sPLO}, 0x05040100
        s_mov_b32 {sPHI}, 0x07060302""")
    def flag_wait(self, idx, val, vt="v14"):
        L = self.lab("fw")
        self.a(f"""v_mov_b32 v15, {L_FLG}
        {L}:
        ds_read_b32 {vt}, v15 offset:{4*idx}
        s_waitcnt lgkmcnt(0)
        v_readfirstlane_b32 {sT}, {vt}
        s_cmp_lt_u32 {sT}, {val}
        s_cbranch_scc1 {L}""")
    def flag_add(self, idx):
        self.a(f"""v_mov_b32 v15, {L_FLG}
        v_mov_b32 v14, 1
        s_mov_b64 exec, 1
        ds_add_u32 v15, v14 offset:{4*idx}
        s_mov_b64 exec, -1""")
    def tile_loads(self, R, voff, srd, rows, nblk=2, blkrows=64):
        a = self.a
        cur = 0
        for be in range(nblk):
            for r in range(8):
                tgt = be * blkrows + rows[r]
                d = tgt - cur
                if d == 1:
                    a(f"s_add_u32 {sO}, {sO}, {sSTR}")
                elif d:
                    a(f"s_add_u32 {sO}, {sO}, {d * self.stride}")
                cur = tgt
                a(f"buffer_load_dwordx4 {vr(R + be*32 + r*4)}, {voff}, s[{srd}:{srd+3}], {sO} offen nt")
    def perm_op(self, dst, R, t):
        for p in range(4):
            lo, hi = R + (2*p)*4 + (t >> 1), R + (2*p+1)*4 + (t >> 1)
            self.a(f"v_perm_b32 v{dst+p}, v{hi}, v{lo}, {sPHI if t & 1 else sPLO}")
    def block_inline(self, R, AOP, ACC, TMP, first):
        self.perm_op(TMP, R, 0)
        for t in range(8):
            if t < 7:
                self.perm_op(TMP + ((t+1) & 3)*4, R, t+1)
            self.a(f"v_mfma_f32_16x16x32_bf16 {vr(ACC+4*t)}, {vr(AOP)}, {vr(TMP+(t&3)*4)}, {'0' if first else vr(ACC+4*t)}")
    def perm_all(self, P, R, nblk=2):
        for be in range(nblk):
            for t in range(8):
                self.perm_op(P + be*32 + t*4, R + be*32, t)
    def mfma_all(self, P, AOP, ACC, nblk=2):
        for be in range(nblk):
            for t in range(8):
                self.a(f"v_mfma_f32_16x16x32_bf16 {vr(ACC+4*t)}, {vr(AOP+4*be)}, {vr(P+be*32+t*4)}, {vr(ACC+4*t) if be else '0'}")
    def publish_f32(self, ACC, X, vtag, voff, soff):
        a = self.a
        for e in range(4):
            a(f"v_add_f32_dpp v{X+e}, v{ACC+4*e+1}, v{ACC+4*e} row_ror:8 row_mask:0xf bank_mask:0x3")
        for e in range(4):
            a(f"v_add_f32_dpp v{X+e}, v{ACC+16+4*e}, v{ACC+16+4*e+1} row_ror:8 row_mask:0xf bank_mask:0xc")
        for e in range(4):
            a(f"v_and_or_b32 v{X+e}, v{X+e}, {sMSK}, {vtag}")
        a(f"buffer_store_dwordx4 {vr(X)}, {voff}, s[{SRDW}:{SRDW+3}], {soff} offen sc1")
    def gather8_issue(self, G, voff, soff, soff2):
        for p in range(8):
            self.a(f"buffer_load_dwordx4 {vr(G+4*p)}, {voff}, s[{SRDW}:{SRDW+3}], {soff if p < 4 else soff2} offen offset:{(p&3)*1024} sc1")
    def tagcheck(self, G, n, vtag, vacc, waits=True):
        a = self.a
        for p in range(n):
            if waits:
                a(f"s_waitcnt vmcnt({n-1-p})")
            for e in range(4):
                if p == 0 and e == 0:
                    a(f"v_xor_b32 {vacc}, v{G}, {vtag}")
                else:
                    a(f"v_bitop3_b32 {vacc}, v{G+4*p+e}, {vacc}, {vtag} bitop3:0xde")
        a(f"""v_and_b32 {vacc}, 0xff, {vacc}
        v_cmp_ne_u32 vcc, 0, {vacc}""")
    def group_gather(self, G, vtag, voff, between=None):
        a = self.a
        L, D = self.lab("gg"), self.lab("ggd")
        a(f"s_add_u32 {sO2}, {sO}, 4096\ns_mov_b32 {sN}, {SPIN}")
        self.gather8_issue(G, voff, sO, sO2)
        if between:
            between()
        a(f"{L}:")
        self.tagcheck(G, 8, vtag, "v13")
        a(f"""s_cbranch_vccz {D}
        s_sub_u32 {sN}, {sN}, 1
        s_cbranch_scc1 {D}""")
        self.gather8_issue(G, voff, sO, sO2)
        a(f"s_branch {L}\n{D}:")
        for k in range(8):
            a(f"v_add_f32 v{G+k}, v{G+k}, v{G+8+k}")
        for k in range(8):
            a(f"v_add_f32 v{G+16+k}, v{G+16+k}, v{G+24+k}")
        for k in range(8):
            a(f"v_add_f32 v{G+k}, v{G+k}, v{G+16+k}")
    def wave_reduce(self, op, v, dst, full=True):
        a = self.a
        steps = (["row_ror:1", "row_ror:2"] if full else []) + ["row_ror:4", "row_ror:8"]
        for s in steps:
            a(f"{op}_dpp {v}, {v}, {v} {s} row_mask:0xf bank_mask:0xf")
        a(f"{op}_dpp {v}, {v}, {v} row_bcast:15 row_mask:0xa bank_mask:0xf")
        a(f"{op}_dpp {v}, {v}, {v} row_bcast:31 row_mask:0xc bank_mask:0xf")
        a(f"v_readlane_b32 {dst}, {v}, 63")

    def build(self):
        a, c = self.a, self.c
        a(f"""s_cmp_ge_u32 s2, 256
        s_cbranch_scc1 L_END
        s_load_dwordx16 s[8:23], s[0:1], 0
        s_load_dwordx8 s[24:31], s[0:1], 64
        s_load_dwordx2 s[32:33], s[0:1], 96""")
        if c.get("diag"):
            a("s_memrealtime s[76:77]")
        self.stamp(0)
        a(f"""v_readfirstlane_b32 s3, v0
        v_and_b32 v0, 63, v0
        s_and_b32 {sX}, s2, 7
        s_lshr_b32 {sR}, s2, 3
        s_lshr_b32 s3, s3, 6
        s_and_b32 {sT}, {sR}, 3
        s_lshl2_add_u32 {sH}, {sX}, {sT}
        s_lshl3_add_u32 {sFT}, {sT}, {sX}
        s_lshr_b32 {sE}, {sR}, 2
        s_lshr_b32 {sQ4}, {sE}, 1
        s_and_b32 {sH2}, {sE}, 1
        v_and_b32 v1, 15, v0
        v_lshrrev_b32 v2, 4, v0
        v_bfe_u32 v3, v0, 3, 1
        v_and_b32 v4, 7, v0
        v_lshlrev_b32 v5, 4, v0
        s_cmp_lg_u32 s3, 0
        s_cbranch_scc1 L_NOTA""")
        self.wave_A()
        a("L_NOTA:")
        a(f"""s_lshr_b32 {sB}, {sX}, 1
        s_and_b32 {sT}, {sX}, 1
        s_lshr_b32 {sSP}, {sR}, 1
        s_lshl4_add_u32 {sSP}, {sT}, {sSP}
        s_and_b32 {sHG}, {sR}, 1
        s_waitcnt lgkmcnt(0)
        s_load_dword {sEP}, s[{P_WS}:{P_WS+1}], 0""")
        self.srd(SRDW, P_WS, WS_SIZE)
        a("""s_cmp_ge_u32 s3, 3
        s_cbranch_scc1 L_WT
        s_cmp_eq_u32 s3, 1
        s_cbranch_scc1 L_WF""")
        self.wave_L()
        a("L_WF:")
        self.wave_F()
        a("L_WT:")
        self.wave_T()
        a("L_END:\ns_endpgm")
        a.raw("L_CODE_END:")

    def wave_A(self):
        a, c = self.a, self.c
        R, P, TMP, ACC, AOP, X, G = 64, 128, 192, 208, 240, 248, 16
        a(f"""s_getpc_b64 s[4:5]
        L_PC:
        s_lshl_b32 {sT}, {sR}, 9
        v_lshl_add_u32 v6, v0, 7, {sT}
        v_min_u32 v6, L_CODE_END-L_PC-4, v6
        s_mov_b64 exec, 15
        global_load_dword v255, v6, s[4:5]
        s_mov_b64 exec, -1
        v_lshl_add_u32 v6, v3, 2, v2
        v_lshlrev_b32 v7, 4, v4
        v_lshl_add_u32 v6, v6, 16, v7
        v_lshlrev_b32 v8, 16, v4
        v_lshl_add_u32 v8, v3, 6, v8
        v_lshl_add_u32 v8, v2, 4, v8
        s_mov_b32 {sSTR}, 8192
        s_lshl_b32 {sO}, {sQ4}, 20
        s_lshl_b32 {sT}, {sH}, 8
        s_lshl_b32 {sT2}, {sH2}, 7
        s_add_u32 {sO2}, {sT}, {sT2}
        s_add_u32 {sO}, {sO}, {sO2}
        s_mov_b32 m0, {L_XN}
        s_mov_b32 s{SRD3+2}, 4096
        s_mov_b32 s{SRD3+3}, 0x20000
        s_mov_b32 s{SRD1+2}, 0x400000
        s_mov_b32 s{SRD1+3}, 0x20000
        s_mov_b32 s{SRD2+2}, 0x400000
        s_mov_b32 s{SRD2+3}, 0x20000
        s_waitcnt lgkmcnt(0)
        s_mov_b64 s[{SRD3}:{SRD3+1}], s[{P_X}:{P_X+1}]
        s_mov_b64 s[{SRD1}:{SRD1+1}], s[{P_WQ}:{P_WQ+1}]
        s_mov_b64 s[{SRD2}:{SRD2+1}], s[{P_WUK}:{P_WUK+1}]""")
        for b in range(4):
            a(f"buffer_load_dwordx4 v5, s[{SRD3}:{SRD3+3}], 0 offen offset:{b*1024} lds")
            if b < 3:
                a("s_add_u32 m0, m0, 32")
        self.stride = 8192
        self.tile_loads(R, "v6", SRD1, list(range(8)))
        a(f"""s_lshl_b32 {sO}, {sE}, 19
        s_add_u32 {sO}, {sO}, {sT}""")
        for t in range(8):
            if t:
                a(f"s_add_u32 {sO}, {sO}, {sSTR}")
            for be in range(2):
                a(f"buffer_load_dwordx4 {vr(P+be*32+t*4)}, v8, s[{SRD2}:{SRD2+3}], {sO} offen offset:{be*128} nt")
        a(f"s_load_dword {sEP}, s[{P_WS}:{P_WS+1}], 0")
        self.stamp(1)
        a("s_waitcnt vmcnt(32)\ns_barrier")
        self.srd(SRDW, P_WS, WS_SIZE)
        a(f"""v_and_b32 v9, 1, v1
        v_lshlrev_b32 v9, 6, v9
        v_lshl_add_u32 v9, v2, 4, v9
        v_lshrrev_b32 v10, 2, v1
        v_mul_u32_u24 v11, {RS}, v10
        s_lshl_b32 {sT}, {sQ4}, 8
        v_add3_u32 v11, v11, v9, {sT}
        v_mul_u32_u24 v10, 272, v10
        v_add_u32 v10, v10, v9
        v_mul_u32_u24 v9, 272, v2
        v_lshl_add_u32 v9, v4, 4, v9
        v_lshl_add_u32 v9, v3, 3, v9
        s_waitcnt lgkmcnt(0)""")
        self.epoch_consts()
        a(f"v_mov_b32 v12, {sTAG}")
        self.flag_wait(0, 4)
        a(f"""ds_read_b128 {vr(AOP)}, v11 offset:{L_XN}
        ds_read_b128 {vr(AOP+4)}, v11 offset:{L_XN+128}
        s_waitcnt vmcnt(24) lgkmcnt(0)""")
        self.block_inline(R, AOP, ACC, TMP, True)
        a("s_waitcnt vmcnt(16)")
        self.stamp(2)
        self.block_inline(R+32, AOP+4, ACC, TMP, False)
        a(f"""s_lshl_b32 {sO}, {sH}, 13
        s_add_u32 {sO}, {sO}, {WS_Q}
        s_lshl_b32 {sT}, {sE}, 10
        s_add_u32 {sT}, {sT}, {sO}""")
        self.publish_f32(ACC, X, "v12", "v5", sT)
        a("s_waitcnt vmcnt(0)")
        self.stamp(3)
        self.group_gather(G, "v12", "v5")
        self.stamp(4)
        def to_operand():
            for k in range(4):
                a(f"v_cvt_pk_bf16_f32 v{G+k}, v{G+2*k}, v{G+2*k+1}")
            a(f"""ds_write_b64 v9, v[{G}:{G+1}] offset:{L_ACTA}
            ds_write_b64 v9, v[{G+2}:{G+3}] offset:{L_ACTA+128}
            ds_read_b128 {vr(AOP)}, v10 offset:{L_ACTA}
            ds_read_b128 {vr(AOP+4)}, v10 offset:{L_ACTA+128}
            s_waitcnt lgkmcnt(0)""")
        to_operand()
        self.mfma_all(P, AOP, ACC)
        a(f"""s_and_b32 {sT}, {sH}, 1
        s_mul_i32 {sT}, {sT}, 24576
        s_add_u32 {sO}, {sT}, {WS_H1}
        s_lshr_b32 {sT}, {sH}, 1
        s_lshl4_add_u32 {sT}, {sE}, {sT}
        s_lshl_b32 {sT2}, {sT}, 7
        s_lshl_b32 {sT}, {sT}, 6
        s_add_u32 {sT}, {sT}, 16384
        v_mov_b32 v13, {sT2}
        v_mov_b32 v14, {sT}
        v_mov_b32_dpp v13, v14 quad_perm:[0,1,2,3] row_mask:0xf bank_mask:0xc
        v_mul_u32_u24 v14, 49152, v2
        v_add3_u32 v13, v13, v14, v7
        v_mov_b32 v14, 0""")
        for t in range(8):
            a(f"v_add_f32_dpp v{G+t}, v{ACC+4*t+1}, v{ACC+4*t} row_ror:8 row_mask:0xf bank_mask:0xf")
        for k in range(4):
            a(f"v_cvt_pk_bf16_f32 v{X+k}, v{G+2*k}, v{G+2*k+1}")
        a(f"""v_add3_u32 v{G}, v{X}, v{X+1}, v{X+2}
        v_add_u32 v{G}, v{G}, v{X+3}
        v_mov_b32_dpp v{X+1}, v14 quad_perm:[0,1,2,3] row_mask:0xf bank_mask:0x4
        v_mov_b32_dpp v{X+2}, v14 quad_perm:[0,1,2,3] row_mask:0xf bank_mask:0x4
        v_add_u32_dpp v{G}, v{G}, v{G} row_shl:4 row_mask:0xf bank_mask:0x1
        v_sub_u32 v{G}, {sF}, v{G}
        v_mov_b32_dpp v{X+3}, v14 quad_perm:[0,1,2,3] row_mask:0xf bank_mask:0x4
        v_mov_b32_dpp v{X}, v{G} row_shr:8 row_mask:0xf bank_mask:0x4
        s_mov_b32 exec_lo, 0x0fff0fff
        s_mov_b32 exec_hi, 0x0fff0fff
        buffer_store_dwordx4 {vr(X)}, v13, s[{SRDW}:{SRDW+3}], {sO} offen sc1
        s_mov_b64 exec, -1""")
        self.stamp(5)
        a("s_waitcnt vmcnt(0)")
        self.flag_add(1)
        a(f"""s_mov_b64 s[{SRD1}:{SRD1+1}], s[{P_WUV}:{P_WUV+1}]
        s_mov_b64 s[{SRD2}:{SRD2+1}], s[{P_WO}:{P_WO+1}]
        v_lshl_add_u32 v8, v3, 3, v2
        v_lshl_add_u32 v8, v8, 15, v7
        s_lshl_b32 {sO}, {sQ4}, 20
        s_lshl_b32 {sT}, {sH}, 8
        s_lshl_b32 {sT2}, {sH2}, 7
        s_add_u32 {sO2}, {sT}, {sT2}
        s_add_u32 {sO}, {sO}, {sO2}
        s_waitcnt lgkmcnt(0)
        s_barrier""")
        if c.get("uv_delay", 1):
            a("s_sleep 4")
        self.tile_loads(R, "v8", SRD1, [0, 1, 2, 3, 16, 17, 18, 19])
        a("s_barrier\ns_barrier\ns_barrier")
        a("s_waitcnt vmcnt(0)")
        self.perm_all(P, R)
        a(f"""v_lshl_add_u32 v8, v3, 2, v2
        v_lshl_add_u32 v8, v8, 13, v7
        s_mov_b32 {sSTR}, 1024
        s_lshl_b32 {sO}, {sH}, 17
        s_lshl_b32 {sT}, {sE}, 7
        s_add_u32 {sO}, {sO}, {sT}
        s_barrier
        s_barrier""")
        self.stride = 1024
        self.tile_loads(R, "v8", SRD2, list(range(8)))
        a(f"""s_bfe_u32 {sT}, s2, 0x20001
        s_lshl_b32 {sT}, {sT}, 10
        s_bfe_u32 {sT2}, s2, 0x30003
        s_lshl_b32 {sT2}, {sT2}, 7
        s_add_u32 {sT}, {sT}, {sT2}
        s_and_b32 {sT2}, s2, 1
        s_lshl_b32 {sT2}, {sT2}, 6
        s_add_u32 {sW}, {sT}, {sT2}
        v_and_b32 v11, 3, v0
        v_lshlrev_b32 v11, 4, v11
        v_bfe_u32 v13, v0, 2, 1
        v_lshl_add_u32 v11, v13, 3, v11
        buffer_load_dwordx2 v[252:253], v11, s[{SRD3}:{SRD3+3}], {sW} offen
        s_barrier""")
        self.stamp(6)
        a(f"""ds_read_b128 {vr(AOP)}, v10 offset:{L_CTX}
        ds_read_b128 {vr(AOP+4)}, v10 offset:{L_CTX+128}
        s_lshl_b32 {sO}, {sH}, 13
        s_add_u32 {sO}, {sO}, {WS_CX}
        s_lshl_b32 {sT}, {sE}, 10
        s_add_u32 {sT}, {sT}, {sO}
        s_waitcnt lgkmcnt(0)""")
        self.mfma_all(P, AOP, ACC)
        self.publish_f32(ACC, X, "v12", "v5", sT)
        a("s_waitcnt vmcnt(0)")
        self.stamp(7)
        self.group_gather(G, "v12", "v5", between=lambda: self.perm_all(P, R))
        self.stamp(8)
        to_operand()
        self.mfma_all(P, AOP, ACC)
        self.h3_addr("v13", sH)
        self.publish_f32(ACC, X, "v12", "v13", sT)
        self.stamp(9)
        a(f"""s_cmp_ge_u32 s2, 64
        s_cbranch_scc1 L_ADONE
        s_lshl_b32 {sO}, s2, 13
        s_add_u32 {sO}, {sO}, {WS_H3}
        s_add_u32 {sO2}, {sO}, 4096
        s_mov_b32 {sN}, {SPIN}
        s_mov_b64 s[{SRD3}:{SRD3+1}], s[{P_OUT}:{P_OUT+1}]""")
        for e in range(4):
            a(f"v_mov_b32 v{G+28+e}, v12")
        a("s_waitcnt vmcnt(0)")
        self.stamp(10)
        L, D = self.lab("h3"), self.lab("h3d")
        a(f"{L}:")
        for p in range(8):
            if p == 7:
                a("s_mov_b32 exec_hi, 0")
            a(f"buffer_load_dwordx4 {vr(G+4*p)}, v5, s[{SRDW}:{SRDW+3}], {sO if p < 4 else sO2} offen offset:{(p&3)*1024} sc1")
        a("s_mov_b32 exec_hi, -1")
        self.tagcheck(G, 8, "v12", "v13")
        a(f"""s_cbranch_vccz {D}
        s_sub_u32 {sN}, {sN}, 1
        s_cbranch_scc0 {L}
        {D}:""")
        for k in range(16):
            a(f"v_add_f32 v{G+k}, v{G+k}, v{G+16+k}")
        for k in range(8):
            a(f"v_add_f32 v{G+k}, v{G+k}, v{G+8+k}")
        for k in range(4):
            a(f"v_add_f32 v{G+k}, v{G+k}, v{G+4+k}")
        for k in range(4):
            a(f"v_add_f32_dpp v{G+k}, v{G+k}, v{G+k} row_ror:8 row_mask:0xf bank_mask:0xf")
        for sw in ("v_permlane16_swap_b32", "v_permlane32_swap_b32"):
            for k in range(4):
                a(f"v_mov_b32 v{G+4+k}, v{G+k}")
            for k in range(4):
                a(f"{sw} v{G+k}, v{G+4+k}")
            for k in range(4):
                a(f"v_add_f32 v{G+k}, v{G+k}, v{G+4+k}")
        a(f"""v_lshlrev_b32 v{G+4}, 16, v252
        v_and_b32 v{G+5}, 0xffff0000, v252
        v_lshlrev_b32 v{G+6}, 16, v253
        v_and_b32 v{G+7}, 0xffff0000, v253""")
        for k in range(4):
            a(f"v_add_f32 v{G+k}, v{G+k}, v{G+4+k}")
        a(f"""v_cvt_pk_bf16_f32 v{G}, v{G}, v{G+1}
        v_cvt_pk_bf16_f32 v{G+1}, v{G+2}, v{G+3}
        s_mov_b64 exec, 0xff
        buffer_store_dwordx2 v[{G}:{G+1}], v11, s[{SRD3}:{SRD3+3}], {sW} offen
        s_cmp_lg_u32 s2, 0
        s_cbranch_scc1 L_ADONE
        s_mov_b64 exec, 1
        v_mov_b32 v13, {sEP}
        buffer_store_dword v13, v5, s[{SRDW}:{SRDW+3}], 0 offen
        L_ADONE:""")
        self.stamp(11)
        self.diag_end(0)
        a("s_endpgm")

    def h3_addr(self, v, slot):
        self.a(f"""v_bfe_u32 {v}, v0, 2, 1
        v_lshl_add_u32 {v}, v2, 1, {v}
        v_lshlrev_b32 {v}, 13, {v}
        v_lshl_add_u32 {v}, v3, 6, {v}
        v_and_b32 v14, 3, v0
        v_lshl_add_u32 {v}, v14, 4, {v}
        s_lshl_b32 {sT}, {sE}, 16
        s_lshl_b32 {sT2}, {slot}, 7
        s_add_u32 {sT}, {sT}, {sT2}
        s_add_u32 {sT}, {sT}, {WS_H3}""")

    def wave_L(self):
        a, c = self.a, self.c
        self.srd(SRD1, P_CKV, 0x1000000)
        a(f"""s_lshl_b32 {sO}, {sB}, 22
        s_lshl_b32 {sT}, {sSP}, 17
        s_add_u32 {sO}, {sO}, {sT}
        s_mov_b32 m0, {L_CKV}
        s_mov_b32 {sN}, 128
        s_barrier""")
        self.stamp(1)
        a(f"""L_CK:
        buffer_load_dwordx4 v5, s[{SRD1}:{SRD1+3}], {sO} offen nt lds
        s_add_u32 {sO}, {sO}, 1024
        s_add_u32 m0, m0, {RS}
        s_waitcnt vmcnt({c.get('pace', 28)})
        s_sub_u32 {sN}, {sN}, 1
        s_cmp_lg_u32 {sN}, 0
        s_cbranch_scc1 L_CK""")
        self.stamp(2)
        a("s_barrier\ns_waitcnt vmcnt(0)")
        self.stamp(3)
        a("s_barrier")
        self.diag_end(2)
        a("s_endpgm")

    def wave_F(self):
        a, c = self.a, self.c
        R, P, TMP, ACC, AOP, X, G = 64, 128, 192, 208, 240, 248, 16
        a(f"""v_mov_b32 v14, 0
        v_lshlrev_b32 v15, 2, v1
        ds_write_b32 v15, v14 offset:{L_FLG}
        s_waitcnt lgkmcnt(0)
        s_barrier""")
        a(f"""s_cmp_ge_u32 {sFT}, 28
        s_cbranch_scc1 L_END""")
        self.epoch_consts()
        a(f"""v_mov_b32 v12, {sTAG}
        s_cmp_eq_u32 {sH2}, 0
        s_cselect_b64 s[{SRD1}:{SRD1+1}], s[{P_WG}:{P_WG+1}], s[{P_WU}:{P_WU+1}]
        s_mov_b32 s{SRD1+2}, {512*3584}
        s_mov_b32 s{SRD1+3}, 0x20000""")
        self.srd(SRD2, P_WD, 1792*1024)
        a(f"""v_lshlrev_b32 v7, 4, v4
        v_lshl_add_u32 v6, v3, 2, v2
        v_lshl_add_u32 v8, v6, 13, v7
        v_mul_u32_u24 v6, {8*3584}, v6
        v_add_u32 v6, v6, v7
        v_and_b32 v9, 1, v1
        v_lshlrev_b32 v9, 6, v9
        v_lshl_add_u32 v9, v2, 4, v9
        v_lshrrev_b32 v10, 2, v1
        v_mul_u32_u24 v11, {RS}, v10
        s_lshl_b32 {sT}, {sQ4}, 8
        v_add3_u32 v11, v11, v9, {sT}
        v_mul_u32_u24 v10, 144, v10
        v_add_u32 v10, v10, v9
        v_mul_u32_u24 v9, 144, v2
        v_lshl_add_u32 v9, v4, 4, v9
        v_lshl_add_u32 v9, v3, 3, v9
        s_mov_b32 {sSTR}, 3584
        s_mul_i32 {sO}, {sQ4}, {128*3584}
        s_lshl_b32 {sT}, {sFT}, 7
        s_add_u32 {sO}, {sO}, {sT}
        s_barrier""")
        self.stride = 3584
        self.tile_loads(R, "v6", SRD1, list(range(8)))
        a(f"""ds_read_b128 {vr(AOP)}, v11 offset:{L_XN}
        ds_read_b128 {vr(AOP+4)}, v11 offset:{L_XN+128}
        s_barrier
        s_barrier
        s_barrier
        s_waitcnt vmcnt(8) lgkmcnt(0)""")
        self.block_inline(R, AOP, ACC, TMP, True)
        a("s_waitcnt vmcnt(0)")
        self.stamp(1)
        self.block_inline(R+32, AOP+4, ACC, TMP, False)
        a(f"""s_lshl_b32 {sW}, {sFT}, 13
        s_add_u32 {sW}, {sW}, {WS_F}
        s_lshl_b32 {sT}, {sE}, 10
        s_add_u32 {sT}, {sT}, {sW}""")
        self.publish_f32(ACC, X, "v12", "v5", sT)
        self.stamp(2)
        a(f"""s_mov_b32 {sSTR}, 1024
        s_lshl_b32 {sO}, {sFT}, 16
        s_lshl_b32 {sT}, {sE}, 7
        s_add_u32 {sO}, {sO}, {sT}
        s_barrier
        s_barrier""")
        self.stride = 1024
        self.tile_loads(R, "v8", SRD2, list(range(8)), nblk=1)
        a(f"s_mov_b32 {sO}, {sW}")
        def btw():
            a("s_barrier")
            a("s_waitcnt vmcnt(8)")
            self.perm_all(P, R, nblk=1)
        self.group_gather(G, "v12", "v5", between=btw)
        self.stamp(3)
        for k in range(4):
            a(f"v_cvt_pk_bf16_f32 v{G+8+k}, v{G+k}, v{G+4+k}")
        c1 = -2.0 * math.sqrt(2.0 / math.pi) * math.log2(math.e)
        a(f"s_mov_b32 {sT}, {f32(c1 * 0.044715)}\nv_mov_b32 v14, {f32(c1)}")
        for k in range(4):
            a(f"v_lshlrev_b32 v{G+k}, 16, v{G+8+k}\nv_and_b32 v{G+4+k}, 0xffff0000, v{G+8+k}")
        for k in range(4):
            a(f"v_mul_f32 v{G+8+k}, v{G+k}, v{G+k}")
        for k in range(4):
            a(f"v_fma_f32 v{G+8+k}, v{G+8+k}, {sT}, v14")
        for k in range(4):
            a(f"v_mul_f32 v{G+8+k}, v{G+8+k}, v{G+k}")
        for k in range(4):
            a(f"v_exp_f32 v{G+8+k}, v{G+8+k}")
        for k in range(4):
            a(f"v_add_f32 v{G+8+k}, 1.0, v{G+8+k}")
        for k in range(4):
            a(f"v_rcp_f32 v{G+8+k}, v{G+8+k}")
        for k in range(4):
            a(f"v_mul_f32 v{G+k}, v{G+k}, v{G+8+k}")
        a(f"""v_cvt_pk_bf16_f32 v{G+8}, v{G}, v{G+1}
        v_cvt_pk_bf16_f32 v{G+9}, v{G+2}, v{G+3}
        v_lshlrev_b32 v{G}, 16, v{G+8}
        v_and_b32 v{G+1}, 0xffff0000, v{G+8}
        v_lshlrev_b32 v{G+2}, 16, v{G+9}
        v_and_b32 v{G+3}, 0xffff0000, v{G+9}""")
        for k in range(4):
            a(f"v_mul_f32 v{G+k}, v{G+k}, v{G+4+k}")
        a(f"""v_cvt_pk_bf16_f32 v{G}, v{G}, v{G+1}
        v_cvt_pk_bf16_f32 v{G+1}, v{G+2}, v{G+3}
        ds_write_b64 v9, v[{G}:{G+1}] offset:{L_ACTF}
        ds_read_b128 {vr(AOP)}, v10 offset:{L_ACTF}
        s_add_u32 {sW}, {sFT}, 32""")
        self.h3_addr("v13", sW)
        a("s_waitcnt lgkmcnt(0)")
        self.mfma_all(P, AOP, ACC, nblk=1)
        self.publish_f32(ACC, X, "v12", "v13", sT)
        self.stamp(4)
        self.diag_end(1)
        a("s_endpgm")

    def wave_T(self):
        a, c = self.a, self.c
        a(f"""s_sub_u32 {sW}, s3, 3
        s_mul_i32 {sT}, {sW}, {RS}
        v_add_u32 v6, {sT}, v5
        s_barrier""")
        a(f"""ds_read_b128 v[16:19], v6 offset:{L_XN}
        s_waitcnt lgkmcnt(0)""")
        for k in range(4):
            a(f"v_lshlrev_b32 v{20+2*k}, 16, v{16+k}\nv_and_b32 v{21+2*k}, 0xffff0000, v{16+k}")
        a("""v_add_f32 v28, v20, v21
        v_add_f32 v29, v22, v23
        v_add_f32 v30, v24, v25
        v_add_f32 v31, v26, v27
        v_add_f32 v28, v28, v29
        v_add_f32 v30, v30, v31
        v_add_f32 v28, v28, v30""")
        self.wave_reduce("v_add_f32", "v28", sT)
        a(f"v_mov_b32 v29, {f32(1.0/512)}\nv_mul_f32 v29, {sT}, v29")
        a("v_sub_f32 v30, v20, v29\nv_mul_f32 v28, v30, v30")
        for k in range(1, 8):
            a(f"v_sub_f32 v30, v{20+k}, v29\nv_fmac_f32 v28, v30, v30")
        self.wave_reduce("v_add_f32", "v28", sT)
        a(f"""v_mov_b32 v30, {f32(1.0/512)}
        v_mul_f32 v30, {sT}, v30
        v_cvt_pk_bf16_f32 v29, v29, v30
        v_and_b32 v30, 0xffff0000, v29
        v_lshlrev_b32 v29, 16, v29
        v_add_f32 v30, {f32(1e-5)}, v30
        v_cvt_pk_bf16_f32 v30, v30, v30
        v_and_b32 v30, 0xffff0000, v30
        v_sqrt_f32 v30, v30
        v_cvt_pk_bf16_f32 v30, v30, v30
        v_and_b32 v30, 0xffff0000, v30
        v_rcp_f32 v30, v30""")
        for k in range(8):
            a(f"v_sub_f32 v{20+k}, v{20+k}, v29")
        for k in range(4):
            a(f"v_cvt_pk_bf16_f32 v{16+k}, v{20+2*k}, v{21+2*k}")
        for k in range(4):
            a(f"v_lshlrev_b32 v{20+2*k}, 16, v{16+k}\nv_and_b32 v{21+2*k}, 0xffff0000, v{16+k}")
        for k in range(8):
            a(f"v_mul_f32 v{20+k}, v{20+k}, v30")
        for k in range(4):
            a(f"v_cvt_pk_bf16_f32 v{16+k}, v{20+2*k}, v{21+2*k}")
        a(f"ds_write_b128 v6, v[16:19] offset:{L_XN}")
        self.flag_add(0)
        self.stamp(1)
        self.epoch_consts()
        a(f"""s_lshl1_add_u32 {sT}, {sB}, {sHG}
        s_mul_i32 {sT}, {sT}, 24576
        s_add_u32 {sT}, {sT}, {WS_H1}
        s_lshl_b32 {sO}, {sW}, 12
        s_add_u32 {sO}, {sO}, {sT}
        s_lshl_b32 {sO2}, {sW}, 11
        s_add_u32 {sO2}, {sO2}, {sT}
        s_add_u32 {sO2}, {sO2}, 16384
        s_lshl_b32 s75, {sF}, 7
        v_lshrrev_b32 v6, 3, v0
        v_mul_u32_u24 v6, {RS}, v6
        v_lshl_add_u32 v6, v4, 4, v6
        s_lshl_b32 {sT}, {sW}, 8
        v_add_u32 v6, {sT}, v6
        v_mul_u32_u24 v7, {RS}, v1
        v_lshl_add_u32 v7, v2, 4, v7
        s_mov_b32 {sN}, {SPIN}""")
        self.flag_wait(1, 1)
        self.stamp(2)
        G = 16
        L, D = self.lab("h1"), self.lab("h1d")
        a(f"{L}:")
        for n in range(4):
            a(f"buffer_load_dwordx4 {vr(G+4*n)}, v5, s[{SRDW}:{SRDW+3}], {sO} offen offset:{n*1024} sc1")
        for n in range(2):
            a(f"buffer_load_dwordx4 {vr(G+16+4*n)}, v5, s[{SRDW}:{SRDW+3}], {sO2} offen offset:{n*1024} sc1")
        self.sumcheck(G, 6, "v13", post=lambda n: a(f"ds_write_b128 v6, {vr(G+4*n)} offset:{L_QA + (n&1)*8*RS + (n>>1)*128}") if n < 4 else None)
        a(f"""s_cmp_eq_u32 {sT}, s75
        s_cbranch_scc1 {D}
        s_waitcnt lgkmcnt(0)
        s_sub_u32 {sN}, {sN}, 1
        s_cbranch_scc0 {L}
        {D}:""")
        self.stamp(3)
        a("s_waitcnt lgkmcnt(0)\ns_barrier")
        QA = 64
        for kk in range(16):
            a(f"ds_read_b128 {vr(QA+4*kk)}, v7 offset:{L_QA + kk*64}")
            if kk == 11:
                a("s_waitcnt lgkmcnt(4)")
        a(f"""s_mul_i32 {sT}, {sW}, {32*RS}
        s_add_u32 {sT}, {sT}, {L_CKV}
        v_add_u32 v8, {sT}, v7
        v_lshrrev_b32 v9, 2, v0
        v_mul_u32_u24 v9, {RS}, v9
        v_and_b32 v10, 3, v0
        v_lshl_add_u32 v9, v10, 3, v9
        s_lshl_b32 {sT}, {sW}, 8
        s_add_u32 {sT}, {sT}, {L_CKV}
        v_add_u32 v9, {sT}, v9
        v_add_u32 v10, {64*RS}, v9
        v_lshlrev_b32 v11, 4, v1
        v_add_u32 v11, {L_MX}, v11
        s_lshl_b32 {sT}, {sW}, 2
        v_add_u32 v12, {sT}, v11
        v_add_u32 v6, {L_PX}, v5
        s_lshl_b32 {sT}, {sW}, 10
        v_add_u32 v7, {sT}, v6
        s_mov_b32 s50, {f32(128 ** -0.5 * math.log2(math.e))}
        s_waitcnt lgkmcnt(0)
        s_barrier""")
        self.stamp(4)
        AB, SA, V = 32, 16, 128
        steps = [(u, kk) for kk in range(16) for u in range(2)]
        DIST = 6
        def rdS(i):
            u, kk = steps[i]
            a(f"ds_read_b128 {vr(AB+4*(i&7))}, v8 offset:{u*16*RS + kk*64}")
        pv = [(tp, ks, tt) for tp in range(4) for ks in range(4) for tt in range(2)]
        self.vnext = 0
        def rdV(cnt):
            for _ in range(cnt):
                if self.vnext >= 64: return
                i, u = self.vnext >> 1, self.vnext & 1
                tp, ks, tt = pv[i]
                off = (ks & 1) * 32 * RS + u * 16 * RS + (2*tp + tt) * 32
                a(f"ds_read_b64_tr_b16 v[{V+4*i+2*u}:{V+4*i+2*u+1}], {'v10' if ks >= 2 else 'v9'} offset:{off}")
                self.vnext += 1
        for i in range(DIST):
            rdS(i)
        extra = 0
        for i in range(32):
            u, kk = steps[i]
            out = min(DIST - 1, 31 - i) + extra
            a(f"s_waitcnt lgkmcnt({out})")
            a(f"v_mfma_f32_16x16x32_bf16 {vr(SA+4*u)}, {vr(AB+4*(i&7))}, {vr(QA+4*kk)}, {vr(SA+4*u) if kk else '0'}")
            if i + DIST < 32:
                rdS(i + DIST)
            else:
                rdV(2); extra += 2
        a(f"""v_max3_f32 v24, v{SA}, v{SA+1}, v{SA+2}
        v_max3_f32 v25, v{SA+4}, v{SA+5}, v{SA+6}
        v_max3_f32 v24, v24, v{SA+3}, v{SA+7}
        v_max_f32 v24, v24, v25
        v_mov_b32 v25, v24
        v_permlane16_swap_b32 v24, v25
        v_max_f32 v24, v24, v25
        v_mov_b32 v25, v24
        v_permlane32_swap_b32 v24, v25
        v_max_f32 v24, v24, v25
        ds_write_b32 v12, v24""")
        nb = c.get("vbatch", 12)
        rdV(nb)
        a(f"s_waitcnt lgkmcnt({nb})\ns_barrier")
        a("ds_read_b128 v[24:27], v11")
        rdV(nb)
        a(f"""s_waitcnt lgkmcnt({nb})
        v_max3_f32 v24, v24, v25, v26
        v_max_f32 v24, v24, v27
        v_mul_f32 v57, s50, v24""")
        for k in range(8):
            a(f"v_fma_f32 v{SA+k}, v{SA+k}, s50, -v57")
        for k in range(8):
            a(f"v_exp_f32 v{SA+k}, v{SA+k}")
        for k in range(4):
            a(f"v_cvt_pk_bf16_f32 v{28+k}, v{SA+2*k}, v{SA+2*k+1}")
        a(f"""ds_write_b128 v7, v[28:31]
        v_add_f32 v24, v{SA}, v{SA+1}
        v_add_f32 v25, v{SA+2}, v{SA+3}
        v_add_f32 v26, v{SA+4}, v{SA+5}
        v_add_f32 v27, v{SA+6}, v{SA+7}
        v_add_f32 v24, v24, v25
        v_add_f32 v26, v26, v27
        v_add_f32 v24, v24, v26
        v_mov_b32 v25, v24
        v_permlane16_swap_b32 v24, v25
        v_add_f32 v24, v24, v25
        v_mov_b32 v25, v24
        v_permlane32_swap_b32 v24, v25
        v_add_f32 v24, v24, v25
        ds_write_b32 v12, v24 offset:256
        s_waitcnt lgkmcnt(0)
        s_barrier""")
        PF = 64
        for ks in range(4):
            a(f"ds_read_b128 {vr(PF+4*ks)}, v6 offset:{ks*1024}")
        a("ds_read_b128 v[24:27], v11 offset:256")
        have = self.vnext
        pre = min(10, 64 - self.vnext)
        rdV(pre)
        a(f"""v_mul_u32_u24 v12, 327680, v1
        v_lshl_add_u32 v12, v2, 4, v12
        s_lshl2_add_u32 {sT}, {sHG}, {sW}
        s_lshl2_add_u32 {sT}, {sT}, {sB}
        s_mul_i32 {sT}, {sT}, 10240
        s_add_u32 {sT}, {sT}, {WS_H2}
        s_lshl_b32 {sO}, {sSP}, 8
        s_add_u32 {sO}, {sO}, {sT}
        s_lshl_b32 {sO2}, {sSP}, 6
        s_add_u32 {sO2}, {sO2}, {sT}
        s_add_u32 {sO2}, {sO2}, 8192
        s_waitcnt lgkmcnt({pre})
        v_add_f32 v24, v24, v25
        v_add_f32 v26, v26, v27
        v_add_f32 v58, v24, v26
        v_mov_b32 v59, 0
        v_add_u32 v56, v57, v58""")
        self.stamp(5)
        OA, OG = 32, 48
        def epi(tp):
            A0, g = OA + (tp & 1) * 8, OG + (tp & 1) * 4
            ops = [f"v_cvt_pk_bf16_f32 v{g+k}, v{A0+2*k}, v{A0+2*k+1}" for k in range(4)]
            ops += [f"buffer_store_dwordx4 {vr(g)}, v12, s[{SRDW}:{SRDW+3}], {sO} offen offset:{tp*64} sc1",
                    f"v_add3_u32 v56, v56, v{g}, v{g+1}", f"v_add3_u32 v56, v56, v{g+2}, v{g+3}"]
            return ops
        pend = []
        for i in range(32):
            tp, ks, tt = pv[i]
            if 2*i + 2 > have:
                a(f"s_waitcnt lgkmcnt({min(15, self.vnext - (2*i + 2))})")
            A0 = OA + (tp & 1) * 8 + tt * 4
            a(f"v_mfma_f32_16x16x32_bf16 {vr(A0)}, {vr(V+4*i)}, {vr(PF+4*ks)}, {vr(A0) if ks else '0'}")
            if self.vnext - max(have, 2*i + 2) < 12:
                rdV(2)
            if (i & 7) == 3 and tp:
                pend = epi(tp - 1)
            for _ in range(2):
                if pend: a(pend.pop(0))
        assert self.vnext == 64 and not pend
        for o in epi(3):
            a(o)
        a(f"""v_sub_u32 v56, {sF}, v56
        buffer_store_dwordx4 v[56:59], v12, s[{SRDW}:{SRDW+3}], {sO2} offen sc1""")
        self.stamp(6)
        a(f"""s_lshl2_add_u32 {sT}, {sH}, {sQ4}
        s_lshl2_add_u32 {sT}, {sT}, {sW}
        s_mul_i32 {sT}, {sT}, 10240
        s_add_u32 {sO}, {sT}, {WS_H2}
        s_add_u32 {sO2}, {sO}, 8192
        v_lshlrev_b32 v6, 4, v1
        v_lshl_add_u32 v7, v2, 9, v6
        v_lshl_add_u32 v6, v2, 11, v6
        s_mul_i32 {sT}, {sW}, 272
        s_add_u32 {sT}, {sT}, {L_CTX}
        v_add_u32 v8, {sT}, v5
        s_mov_b32 {sN}, {SPIN}
        s_waitcnt vmcnt(0)
        s_barrier""")
        self.stamp(7)
        G, TMP, ACC = 64, 104, 128
        def issue():
            for u in range(2):
                a(f"buffer_load_dwordx4 {vr(G+4*u)}, v7, s[{SRDW}:{SRDW+3}], {sO2} offen offset:{u*256} sc1")
            for n in range(8):
                a(f"buffer_load_dwordx4 {vr(G+8+4*n)}, v6, s[{SRDW}:{SRDW+3}], {sO} offen offset:{n*256} sc1")
        issue()
        a("s_barrier")
        L, D = self.lab("h2"), self.lab("h2d")
        a(f"{L}:")
        self.sumcheck(G, 10, "v13")
        a(f"""s_cmp_eq_u32 {sT}, s75
        s_cbranch_scc1 {D}
        s_sub_u32 {sN}, {sN}, 1
        s_cbranch_scc1 {D}""")
        issue()
        a(f"s_branch {L}\n{D}:")
        self.stamp(8)
        a(f"v_max_f32 v16, v{G+1}, v{G+5}")
        self.wave_reduce("v_max_f32", "v16", sT, full=False)
        a(f"""v_subrev_f32 v16, {sT}, v{G+1}
        v_subrev_f32 v17, {sT}, v{G+5}
        v_exp_f32 v16, v16
        v_exp_f32 v17, v17
        v_cvt_pk_bf16_f32 v18, v16, v17
        v_mov_b32_dpp v19, v18 row_shl:4 row_mask:0xf bank_mask:0x5
        v_lshlrev_b32 v16, 16, v18
        v_and_b32 v17, 0xffff0000, v18
        v_perm_b32 v24, v19, v18, {sPLO}
        v_perm_b32 v25, v19, v18, {sPHI}
        v_mul_f32 v16, v16, v{G+2}
        v_fmac_f32 v16, v17, v{G+6}
        v_mov_b32_dpp v20, v24 row_newbcast:0 row_mask:0xf bank_mask:0xf
        v_mov_b32_dpp v21, v24 row_newbcast:8 row_mask:0xf bank_mask:0xf
        v_mov_b32_dpp v22, v25 row_newbcast:0 row_mask:0xf bank_mask:0xf
        v_mov_b32_dpp v23, v25 row_newbcast:8 row_mask:0xf bank_mask:0xf""")
        self.block_inline(G+8, 20, ACC, TMP, True)
        self.wave_reduce("v_add_f32", "v16", sT, full=False)
        a(f"v_rcp_f32 v16, {sT}")
        for t in range(8):
            a(f"v_mul_f32 v{24+t}, v16, v{ACC+4*t}")
        for k in range(4):
            a(f"v_cvt_pk_bf16_f32 v{20+k}, v{24+2*k}, v{25+2*k}")
        a(f"""s_mov_b64 exec, 0xffff
        ds_write_b128 v8, v[20:23]
        s_waitcnt lgkmcnt(0)
        s_barrier""")
        self.stamp(9)
        self.diag_end(3)

    def sumcheck(self, G, n, vacc, post=None, pre=None):
        a = self.a
        for p in range(n):
            a(f"s_waitcnt vmcnt({n-1-p})")
            if post: post(p)
            if p == 0:
                a(f"v_add_u32 {vacc}, v{G}, v{G+1}")
            else:
                a(f"v_add3_u32 {vacc}, {vacc}, v{G+4*p}, v{G+4*p+1}")
            a(f"v_add3_u32 {vacc}, {vacc}, v{G+4*p+2}, v{G+4*p+3}")
        self.wave_reduce("v_add_u32", vacc, sT)

HEADER = open("cdna_kernels/%s.s.ref" % NAME).read().split("; Override launch")[0]

def generate(cfg):
    k = K(cfg)
    k.build()
    body = k.a.text()
    return f"""{HEADER}; Override launch geometry by editing the next line (default: block=256,
; @launch grid=(256,1,1) block=(448,1,1) lds={L_END}
.amdgcn_target "amdgcn-amd-amdhsa--gfx950"
.text
.globl {NAME}_kernel
.p2align 8
.type {NAME}_kernel,@function
{NAME}_kernel:
{body}.section .rodata,"a"
.p2align 6
.amdhsa_kernel {NAME}_kernel
  .amdhsa_next_free_vgpr 256
  .amdhsa_next_free_sgpr 102
  .amdhsa_accum_offset 256
  .amdhsa_group_segment_fixed_size 0
  .amdhsa_kernarg_size 104
  .amdhsa_user_sgpr_count 2
  .amdhsa_user_sgpr_kernarg_segment_ptr 1
  .amdhsa_system_sgpr_workgroup_id_x 1
.end_amdhsa_kernel
"""

if __name__ == "__main__":
    out = sys.argv[1]
    cfg = {}
    for kv in sys.argv[2:]:
        k, v = kv.split("=")
        cfg[k] = int(v)
    open(out, "w").write(generate(cfg))
```

```python
import sys, math, struct
from emit import Asm

NAME = "parallel_sum__compressed_kv_cla__glu_gated_geglu__decode"

def f32(x):
    return "0x%08x" % struct.unpack("<I", struct.pack("<f", x))[0]

WS_Q   = 0x001000
WS_F   = WS_Q + 0x40000
WS_CX  = WS_F + 0x40000
WS_H1  = WS_CX + 0x40000
WS_H3  = WS_H1 + 0x40000
WS_H2  = WS_H3 + 0x80000
WS_DIAG = WS_H2 + 0x500000
WS_SIZE = WS_DIAG + 0x40000
RS = 1056
L_QA = 0
L_XN = L_QA + 16 * RS
L_PX = L_XN + 4 * RS
L_MX = L_PX + 4096
L_LX = L_MX + 256
L_ACTA = L_LX + 256
L_ACTF = L_ACTA + 4 * 272
L_CTX = L_ACTF + 4 * 144
L_FLG = L_CTX + 4 * 272
L_CKV = (L_FLG + 64 + 255) // 256 * 256
L_END = L_CKV + 128 * RS
assert L_END <= 163840

sX, sR, sH, sE, sQ4, sH2, sB, sSP, sHG, sFT = "s34", "s35", "s36", "s37", "s38", "s39", "s40", "s41", "s42", "s43"
sEP, sTAG, sF, sMSK, sPLO, sPHI = "s44", "s45", "s46", "s47", "s48", "s49"
SRD1, SRD2, SRDW, SRD3 = 52, 56, 60, 64
sO, sO2, sT, sT2, sN, sSTR, sW = "s68", "s69", "s70", "s71", "s72", "s73", "s74"
P_X, P_CKV, P_WQ, P_WUK, P_WUV, P_WO, P_WG, P_WU, P_WD, P_OUT, P_WS = 8, 10, 12, 14, 16, 18, 22, 24, 26, 28, 32
SPIN = 4096

def vr(b, n=4):
    return f"v[{b}:{b+n-1}]"

class K:
    def __init__(self, cfg):
        self.c = cfg
        self.a = Asm()
        self.uid = 0
        self.nst = 0
    def lab(self, s):
        self.uid += 1
        return f"L_{s}_{self.uid}"
    def srd(self, r, p, size):
        self.a(f"""s_mov_b32 s{r}, s{p}
        s_mov_b32 s{r+1}, s{p+1}
        s_mov_b32 s{r+2}, {size}
        s_mov_b32 s{r+3}, 0x20000""")
    def stamp(self, k):
        if self.c.get("diag"):
            self.a(f"s_memtime s[{78+2*k}:{79+2*k}]")
    def diag_end(self, w):
        if not self.c.get("diag"):
            return
        a = self.a
        a("s_waitcnt lgkmcnt(0)\ns_mov_b64 exec, -1")
        for k in range(13):
            a(f"v_writelane_b32 v8, s{76+2*k}, {k}")
        a(f"""s_lshl_b32 {sT}, s2, 3
        s_add_u32 {sT}, {sT}, s3
        s_lshl_b32 {sT}, {sT}, 6
        s_add_u32 {sT}, {sT}, {WS_DIAG}
        v_lshlrev_b32 v9, 2, v0
        s_mov_b64 exec, 0xffff
        buffer_store_dword v8, v9, s[{SRDW}:{SRDW+3}], {sT} offen""")
        if self.c.get("dbg") is not None and w == 0:
            L = self.lab("dbg")
            self.srd(SRD1, 30, 256)
            a(f"""s_cmp_lg_u32 s2, {self.c['dbg']}
            s_cbranch_scc1 {L}
            v_subrev_u32 v8, s78, v8
            buffer_store_dword v8, v9, s[{SRD1}:{SRD1+3}], 0 offen
            {L}:""")
    def epoch_consts(self):
        self.a(f"""s_add_u32 {sEP}, {sEP}, 1
        s_and_b32 {sTAG}, {sEP}, 0xff
        s_mul_i32 {sF}, {sEP}, 0x3c6ef362
        s_or_b32 {sF}, {sF}, 1
        s_mov_b32 {sMSK}, 0xffffff00
        s_mov_b32 {sPLO}, 0x05040100
        s_mov_b32 {sPHI}, 0x07060302""")
    def flag_wait(self, idx, val, vt="v14"):
        L = self.lab("fw")
        self.a(f"""v_mov_b32 v15, {L_FLG}
        {L}:
        ds_read_b32 {vt}, v15 offset:{4*idx}
        s_waitcnt lgkmcnt(0)
        v_readfirstlane_b32 {sT}, {vt}
        s_cmp_lt_u32 {sT}, {val}
        s_cbranch_scc1 {L}""")
    def flag_add(self, idx):
        self.a(f"""v_mov_b32 v15, {L_FLG}
        v_mov_b32 v14, 1
        s_mov_b64 exec, 1
        ds_add_u32 v15, v14 offset:{4*idx}
        s_mov_b64 exec, -1""")
    def tile_loads(self, R, voff, srd, rows, nblk=2, blkrows=64):
        a = self.a
        cur = 0
        for be in range(nblk):
            for r in range(8):
                tgt = be * blkrows + rows[r]
                d = tgt - cur
                if d == 1:
                    a(f"s_add_u32 {sO}, {sO}, {sSTR}")
                elif d:
                    a(f"s_add_u32 {sO}, {sO}, {d * self.stride}")
                cur = tgt
                a(f"buffer_load_dwordx4 {vr(R + be*32 + r*4)}, {voff}, s[{srd}:{srd+3}], {sO} offen nt")
    def perm_op(self, dst, R, t):
        for p in range(4):
            lo, hi = R + (2*p)*4 + (t >> 1), R + (2*p+1)*4 + (t >> 1)
            self.a(f"v_perm_b32 v{dst+p}, v{hi}, v{lo}, {sPHI if t & 1 else sPLO}")
    def block_inline(self, R, AOP, ACC, TMP, first):
        self.perm_op(TMP, R, 0)
        for t in range(8):
            if t < 7:
                self.perm_op(TMP + ((t+1) & 3)*4, R, t+1)
            self.a(f"v_mfma_f32_16x16x32_bf16 {vr(ACC+4*t)}, {vr(AOP)}, {vr(TMP+(t&3)*4)}, {'0' if first else vr(ACC+4*t)}")
    def perm_all(self, P, R, nblk=2):
        for be in range(nblk):
            for t in range(8):
                self.perm_op(P + be*32 + t*4, R + be*32, t)
    def mfma_all(self, P, AOP, ACC, nblk=2):
        for be in range(nblk):
            for t in range(8):
                self.a(f"v_mfma_f32_16x16x32_bf16 {vr(ACC+4*t)}, {vr(AOP+4*be)}, {vr(P+be*32+t*4)}, {vr(ACC+4*t) if be else '0'}")
    def publish_f32(self, ACC, X, vtag, voff, soff):
        a = self.a
        for e in range(4):
            a(f"v_add_f32_dpp v{X+e}, v{ACC+4*e+1}, v{ACC+4*e} row_ror:8 row_mask:0xf bank_mask:0x3")
        for e in range(4):
            a(f"v_add_f32_dpp v{X+e}, v{ACC+16+4*e}, v{ACC+16+4*e+1} row_ror:8 row_mask:0xf bank_mask:0xc")
        for e in range(4):
            a(f"v_and_or_b32 v{X+e}, v{X+e}, {sMSK}, {vtag}")
        a(f"buffer_store_dwordx4 {vr(X)}, {voff}, s[{SRDW}:{SRDW+3}], {soff} offen sc1")
    def gather8_issue(self, G, voff, soff, soff2):
        for p in range(8):
            self.a(f"buffer_load_dwordx4 {vr(G+4*p)}, {voff}, s[{SRDW}:{SRDW+3}], {soff if p < 4 else soff2} offen offset:{(p&3)*1024} sc1")
    def tagcheck(self, G, n, vtag, vacc, waits=True):
        a = self.a
        for p in range(n):
            if waits:
                a(f"s_waitcnt vmcnt({n-1-p})")
            for e in range(4):
                if p == 0 and e == 0:
                    a(f"v_xor_b32 {vacc}, v{G}, {vtag}")
                else:
                    a(f"v_bitop3_b32 {vacc}, v{G+4*p+e}, {vacc}, {vtag} bitop3:0xde")
        a(f"""v_and_b32 {vacc}, 0xff, {vacc}
        v_cmp_ne_u32 vcc, 0, {vacc}""")
    def group_gather(self, G, vtag, voff, between=None):
        a = self.a
        L, D = self.lab("gg"), self.lab("ggd")
        a(f"s_add_u32 {sO2}, {sO}, 4096\ns_mov_b32 {sN}, {SPIN}")
        self.gather8_issue(G, voff, sO, sO2)
        if between:
            between()
        a(f"{L}:")
        self.tagcheck(G, 8, vtag, "v13")
        a(f"""s_cbranch_vccz {D}
        s_sub_u32 {sN}, {sN}, 1
        s_cbranch_scc1 {D}""")
        self.gather8_issue(G, voff, sO, sO2)
        a(f"s_branch {L}\n{D}:")
        for k in range(8):
            a(f"v_add_f32 v{G+k}, v{G+k}, v{G+8+k}")
        for k in range(8):
            a(f"v_add_f32 v{G+16+k}, v{G+16+k}, v{G+24+k}")
        for k in range(8):
            a(f"v_add_f32 v{G+k}, v{G+k}, v{G+16+k}")
    def wave_reduce(self, op, v, dst, full=True):
        a = self.a
        steps = (["row_ror:1", "row_ror:2"] if full else []) + ["row_ror:4", "row_ror:8"]
        for s in steps:
            a(f"{op}_dpp {v}, {v}, {v} {s} row_mask:0xf bank_mask:0xf")
        a(f"{op}_dpp {v}, {v}, {v} row_bcast:15 row_mask:0xa bank_mask:0xf")
        a(f"{op}_dpp {v}, {v}, {v} row_bcast:31 row_mask:0xc bank_mask:0xf")
        a(f"v_readlane_b32 {dst}, {v}, 63")

    def build(self):
        a, c = self.a, self.c
        a(f"""s_cmp_ge_u32 s2, 256
        s_cbranch_scc1 L_END
        s_load_dwordx16 s[8:23], s[0:1], 0
        s_load_dwordx8 s[24:31], s[0:1], 64
        s_load_dwordx2 s[32:33], s[0:1], 96""")
        if c.get("diag"):
            a("s_memrealtime s[76:77]")
        self.stamp(0)
        a(f"""v_readfirstlane_b32 s3, v0
        v_and_b32 v0, 63, v0
        s_and_b32 {sX}, s2, 7
        s_lshr_b32 {sR}, s2, 3
        s_lshr_b32 s3, s3, 6
        s_and_b32 {sT}, {sR}, 3
        s_lshl2_add_u32 {sH}, {sX}, {sT}
        s_lshl3_add_u32 {sFT}, {sT}, {sX}
        s_lshr_b32 {sE}, {sR}, 2
        s_lshr_b32 {sQ4}, {sE}, 1
        s_and_b32 {sH2}, {sE}, 1
        v_and_b32 v1, 15, v0
        v_lshrrev_b32 v2, 4, v0
        v_bfe_u32 v3, v0, 3, 1
        v_and_b32 v4, 7, v0
        v_lshlrev_b32 v5, 4, v0
        s_cmp_lg_u32 s3, 0
        s_cbranch_scc1 L_NOTA""")
        self.wave_A()
        a("L_NOTA:")
        a(f"""s_lshr_b32 {sB}, {sX}, 1
        s_and_b32 {sT}, {sX}, 1
        s_lshr_b32 {sSP}, {sR}, 1
        s_lshl4_add_u32 {sSP}, {sT}, {sSP}
        s_and_b32 {sHG}, {sR}, 1
        s_waitcnt lgkmcnt(0)
        s_load_dword {sEP}, s[{P_WS}:{P_WS+1}], 0""")
        self.srd(SRDW, P_WS, WS_SIZE)
        a("""s_cmp_ge_u32 s3, 3
        s_cbranch_scc1 L_WT
        s_cmp_eq_u32 s3, 1
        s_cbranch_scc1 L_WF""")
        self.wave_L()
        a("L_WF:")
        self.wave_F()
        a("L_WT:")
        self.wave_T()
        a("L_END:\ns_endpgm")
        a.raw("L_CODE_END:")

    def wave_A(self):
        a, c = self.a, self.c
        R, P, TMP, ACC, AOP, X, G = 64, 128, 192, 208, 240, 248, 16
        a(f"""s_getpc_b64 s[4:5]
        L_PC:
        s_lshl_b32 {sT}, {sR}, 9
        v_lshl_add_u32 v6, v0, 7, {sT}
        v_min_u32 v6, L_CODE_END-L_PC-4, v6
        s_mov_b64 exec, 15
        global_load_dword v255, v6, s[4:5]
        s_mov_b64 exec, -1
        v_lshl_add_u32 v6, v3, 2, v2
        v_lshlrev_b32 v7, 4, v4
        v_lshl_add_u32 v6, v6, 16, v7
        v_lshlrev_b32 v8, 16, v4
        v_lshl_add_u32 v8, v3, 6, v8
        v_lshl_add_u32 v8, v2, 4, v8
        s_mov_b32 {sSTR}, 8192
        s_lshl_b32 {sO}, {sQ4}, 20
        s_lshl_b32 {sT}, {sH}, 8
        s_lshl_b32 {sT2}, {sH2}, 7
        s_add_u32 {sO2}, {sT}, {sT2}
        s_add_u32 {sO}, {sO}, {sO2}
        s_mov_b32 m0, {L_XN}
        s_mov_b32 s{SRD3+2}, 4096
        s_mov_b32 s{SRD3+3}, 0x20000
        s_mov_b32 s{SRD1+2}, 0x400000
        s_mov_b32 s{SRD1+3}, 0x20000
        s_mov_b32 s{SRD2+2}, 0x400000
        s_mov_b32 s{SRD2+3}, 0x20000
        s_waitcnt lgkmcnt(0)
        s_mov_b64 s[{SRD3}:{SRD3+1}], s[{P_X}:{P_X+1}]
        s_mov_b64 s[{SRD1}:{SRD1+1}], s[{P_WQ}:{P_WQ+1}]
        s_mov_b64 s[{SRD2}:{SRD2+1}], s[{P_WUK}:{P_WUK+1}]""")
        for b in range(4):
            a(f"buffer_load_dwordx4 v5, s[{SRD3}:{SRD3+3}], 0 offen offset:{b*1024} lds")
            if b < 3:
                a("s_add_u32 m0, m0, 32")
        self.stride = 8192
        self.tile_loads(R, "v6", SRD1, list(range(8)))
        a(f"""s_lshl_b32 {sO}, {sE}, 19
        s_add_u32 {sO}, {sO}, {sT}""")
        for t in range(8):
            if t:
                a(f"s_add_u32 {sO}, {sO}, {sSTR}")
            for be in range(2):
                a(f"buffer_load_dwordx4 {vr(P+be*32+t*4)}, v8, s[{SRD2}:{SRD2+3}], {sO} offen offset:{be*128} nt")
        a(f"s_load_dword {sEP}, s[{P_WS}:{P_WS+1}], 0")
        self.stamp(1)
        a("s_waitcnt vmcnt(32)\ns_barrier")
        self.srd(SRDW, P_WS, WS_SIZE)
        a(f"""v_and_b32 v9, 1, v1
        v_lshlrev_b32 v9, 6, v9
        v_lshl_add_u32 v9, v2, 4, v9
        v_lshrrev_b32 v10, 2, v1
        v_mul_u32_u24 v11, {RS}, v10
        s_lshl_b32 {sT}, {sQ4}, 8
        v_add3_u32 v11, v11, v9, {sT}
        v_mul_u32_u24 v10, 272, v10
        v_add_u32 v10, v10, v9
        v_mul_u32_u24 v9, 272, v2
        v_lshl_add_u32 v9, v4, 4, v9
        v_lshl_add_u32 v9, v3, 3, v9
        s_waitcnt lgkmcnt(0)""")
        self.epoch_consts()
        a(f"v_mov_b32 v12, {sTAG}")
        self.flag_wait(0, 4)
        a(f"""ds_read_b128 {vr(AOP)}, v11 offset:{L_XN}
        ds_read_b128 {vr(AOP+4)}, v11 offset:{L_XN+128}
        s_waitcnt vmcnt(24) lgkmcnt(0)""")
        self.block_inline(R, AOP, ACC, TMP, True)
        a("s_waitcnt vmcnt(16)")
        self.stamp(2)
        self.block_inline(R+32, AOP+4, ACC, TMP, False)
        a(f"""s_lshl_b32 {sO}, {sH}, 13
        s_add_u32 {sO}, {sO}, {WS_Q}
        s_lshl_b32 {sT}, {sE}, 10
        s_add_u32 {sT}, {sT}, {sO}""")
        self.publish_f32(ACC, X, "v12", "v5", sT)
        a("s_waitcnt vmcnt(0)")
        self.stamp(3)
        self.group_gather(G, "v12", "v5")
        self.stamp(4)
        def to_operand():
            for k in range(4):
                a(f"v_cvt_pk_bf16_f32 v{G+k}, v{G+2*k}, v{G+2*k+1}")
            a(f"""ds_write_b64 v9, v[{G}:{G+1}] offset:{L_ACTA}
            ds_write_b64 v9, v[{G+2}:{G+3}] offset:{L_ACTA+128}
            ds_read_b128 {vr(AOP)}, v10 offset:{L_ACTA}
            ds_read_b128 {vr(AOP+4)}, v10 offset:{L_ACTA+128}
            s_waitcnt lgkmcnt(0)""")
        to_operand()
        self.mfma_all(P, AOP, ACC)
        a(f"""s_and_b32 {sT}, {sH}, 1
        s_mul_i32 {sT}, {sT}, 24576
        s_add_u32 {sO}, {sT}, {WS_H1}
        s_lshr_b32 {sT}, {sH}, 1
        s_lshl4_add_u32 {sT}, {sE}, {sT}
        s_lshl_b32 {sT2}, {sT}, 7
        s_lshl_b32 {sT}, {sT}, 6
        s_add_u32 {sT}, {sT}, 16384
        v_mov_b32 v13, {sT2}
        v_mov_b32 v14, {sT}
        v_mov_b32_dpp v13, v14 quad_perm:[0,1,2,3] row_mask:0xf bank_mask:0xc
        v_mul_u32_u24 v14, 49152, v2
        v_add3_u32 v13, v13, v14, v7
        v_mov_b32 v14, 0""")
        for t in range(8):
            a(f"v_add_f32_dpp v{G+t}, v{ACC+4*t+1}, v{ACC+4*t} row_ror:8 row_mask:0xf bank_mask:0xf")
        for k in range(4):
            a(f"v_cvt_pk_bf16_f32 v{X+k}, v{G+2*k}, v{G+2*k+1}")
        a(f"""v_add3_u32 v{G}, v{X}, v{X+1}, v{X+2}
        v_add_u32 v{G}, v{G}, v{X+3}
        v_mov_b32_dpp v{X+1}, v14 quad_perm:[0,1,2,3] row_mask:0xf bank_mask:0x4
        v_mov_b32_dpp v{X+2}, v14 quad_perm:[0,1,2,3] row_mask:0xf bank_mask:0x4
        v_add_u32_dpp v{G}, v{G}, v{G} row_shl:4 row_mask:0xf bank_mask:0x1
        v_sub_u32 v{G}, {sF}, v{G}
        v_mov_b32_dpp v{X+3}, v14 quad_perm:[0,1,2,3] row_mask:0xf bank_mask:0x4
        v_mov_b32_dpp v{X}, v{G} row_shr:8 row_mask:0xf bank_mask:0x4
        s_mov_b32 exec_lo, 0x0fff0fff
        s_mov_b32 exec_hi, 0x0fff0fff
        buffer_store_dwordx4 {vr(X)}, v13, s[{SRDW}:{SRDW+3}], {sO} offen sc1
        s_mov_b64 exec, -1""")
        self.stamp(5)
        a("s_waitcnt vmcnt(0)")
        self.flag_add(1)
        a(f"""s_mov_b64 s[{SRD1}:{SRD1+1}], s[{P_WUV}:{P_WUV+1}]
        s_mov_b64 s[{SRD2}:{SRD2+1}], s[{P_WO}:{P_WO+1}]
        v_lshl_add_u32 v8, v3, 3, v2
        v_lshl_add_u32 v8, v8, 15, v7
        s_lshl_b32 {sO}, {sQ4}, 20
        s_lshl_b32 {sT}, {sH}, 8
        s_lshl_b32 {sT2}, {sH2}, 7
        s_add_u32 {sO2}, {sT}, {sT2}
        s_add_u32 {sO}, {sO}, {sO2}
        s_waitcnt lgkmcnt(0)
        s_barrier""")
        if c.get("uv_delay", 1):
            a("s_sleep 4")
        self.tile_loads(R, "v8", SRD1, [0, 1, 2, 3, 16, 17, 18, 19])
        a("s_barrier\ns_barrier\ns_barrier")
        a("s_waitcnt vmcnt(0)")
        self.perm_all(P, R)
        a(f"""v_lshl_add_u32 v8, v3, 2, v2
        v_lshl_add_u32 v8, v8, 13, v7
        s_mov_b32 {sSTR}, 1024
        s_lshl_b32 {sO}, {sH}, 17
        s_lshl_b32 {sT}, {sE}, 7
        s_add_u32 {sO}, {sO}, {sT}
        s_barrier
        s_barrier""")
        self.stride = 1024
        self.tile_loads(R, "v8", SRD2, list(range(8)))
        a(f"""s_bfe_u32 {sT}, s2, 0x20001
        s_lshl_b32 {sT}, {sT}, 10
        s_bfe_u32 {sT2}, s2, 0x30003
        s_lshl_b32 {sT2}, {sT2}, 7
        s_add_u32 {sT}, {sT}, {sT2}
        s_and_b32 {sT2}, s2, 1
        s_lshl_b32 {sT2}, {sT2}, 6
        s_add_u32 {sW}, {sT}, {sT2}
        v_and_b32 v11, 3, v0
        v_lshlrev_b32 v11, 4, v11
        v_bfe_u32 v13, v0, 2, 1
        v_lshl_add_u32 v11, v13, 3, v11
        buffer_load_dwordx2 v[252:253], v11, s[{SRD3}:{SRD3+3}], {sW} offen
        s_barrier""")
        self.stamp(6)
        a(f"""ds_read_b128 {vr(AOP)}, v10 offset:{L_CTX}
        ds_read_b128 {vr(AOP+4)}, v10 offset:{L_CTX+128}
        s_lshl_b32 {sO}, {sH}, 13
        s_add_u32 {sO}, {sO}, {WS_CX}
        s_lshl_b32 {sT}, {sE}, 10
        s_add_u32 {sT}, {sT}, {sO}
        s_waitcnt lgkmcnt(0)""")
        self.mfma_all(P, AOP, ACC)
        self.publish_f32(ACC, X, "v12", "v5", sT)
        a("s_waitcnt vmcnt(0)")
        self.stamp(7)
        self.group_gather(G, "v12", "v5", between=lambda: self.perm_all(P, R))
        self.stamp(8)
        to_operand()
        self.mfma_all(P, AOP, ACC)
        self.h3_addr("v13", sH)
        self.publish_f32(ACC, X, "v12", "v13", sT)
        self.stamp(9)
        a(f"""s_cmp_ge_u32 s2, 64
        s_cbranch_scc1 L_ADONE
        s_lshl_b32 {sO}, s2, 13
        s_add_u32 {sO}, {sO}, {WS_H3}
        s_add_u32 {sO2}, {sO}, 4096
        s_mov_b32 {sN}, {SPIN}
        s_mov_b64 s[{SRD3}:{SRD3+1}], s[{P_OUT}:{P_OUT+1}]""")
        for e in range(4):
            a(f"v_mov_b32 v{G+28+e}, v12")
        a("s_waitcnt vmcnt(0)")
        self.stamp(10)
        L, D = self.lab("h3"), self.lab("h3d")
        a(f"{L}:")
        for p in range(8):
            if p == 7:
                a("s_mov_b32 exec_hi, 0")
            a(f"buffer_load_dwordx4 {vr(G+4*p)}, v5, s[{SRDW}:{SRDW+3}], {sO if p < 4 else sO2} offen offset:{(p&3)*1024} sc1")
        a("s_mov_b32 exec_hi, -1")
        self.tagcheck(G, 8, "v12", "v13")
        a(f"""s_cbranch_vccz {D}
        s_sub_u32 {sN}, {sN}, 1
        s_cbranch_scc0 {L}
        {D}:""")
        for k in range(16):
            a(f"v_add_f32 v{G+k}, v{G+k}, v{G+16+k}")
        for k in range(8):
            a(f"v_add_f32 v{G+k}, v{G+k}, v{G+8+k}")
        for k in range(4):
            a(f"v_add_f32 v{G+k}, v{G+k}, v{G+4+k}")
        for k in range(4):
            a(f"v_add_f32_dpp v{G+k}, v{G+k}, v{G+k} row_ror:8 row_mask:0xf bank_mask:0xf")
        for sw in ("v_permlane16_swap_b32", "v_permlane32_swap_b32"):
            for k in range(4):
                a(f"v_mov_b32 v{G+4+k}, v{G+k}")
            for k in range(4):
                a(f"{sw} v{G+k}, v{G+4+k}")
            for k in range(4):
                a(f"v_add_f32 v{G+k}, v{G+k}, v{G+4+k}")
        a(f"""v_lshlrev_b32 v{G+4}, 16, v252
        v_and_b32 v{G+5}, 0xffff0000, v252
        v_lshlrev_b32 v{G+6}, 16, v253
        v_and_b32 v{G+7}, 0xffff0000, v253""")
        for k in range(4):
            a(f"v_add_f32 v{G+k}, v{G+k}, v{G+4+k}")
        a(f"""v_cvt_pk_bf16_f32 v{G}, v{G}, v{G+1}
        v_cvt_pk_bf16_f32 v{G+1}, v{G+2}, v{G+3}
        s_mov_b64 exec, 0xff
        buffer_store_dwordx2 v[{G}:{G+1}], v11, s[{SRD3}:{SRD3+3}], {sW} offen
        s_cmp_lg_u32 s2, 0
        s_cbranch_scc1 L_ADONE
        s_mov_b64 exec, 1
        v_mov_b32 v13, {sEP}
        buffer_store_dword v13, v5, s[{SRDW}:{SRDW+3}], 0 offen
        L_ADONE:""")
        self.stamp(11)
        if c.get("fixed"):
            a(f"""s_cmp_lg_u32 s2, {c.get('fwg', 0)}
            s_cbranch_scc1 L_FX2
            L_FX:
            s_memrealtime s[4:5]
            s_waitcnt lgkmcnt(0)
            s_sub_u32 s4, s4, s76
            s_cmp_lt_u32 s4, {c['fixed']}
            s_cbranch_scc1 L_FX""")
            if c.get("addstamp"):
                a(f"""s_memtime s[6:7]
                s_sub_u32 s50, s{78+2*c['addstamp']}, s78
                L_FX3:
                s_memtime s[4:5]
                s_waitcnt lgkmcnt(0)
                s_sub_u32 s4, s4, s6
                s_cmp_lt_u32 s4, s50
                s_cbranch_scc1 L_FX3""")
            a("L_FX2:")
        self.diag_end(0)
        a("s_endpgm")

    def h3_addr(self, v, slot):
        self.a(f"""v_bfe_u32 {v}, v0, 2, 1
        v_lshl_add_u32 {v}, v2, 1, {v}
        v_lshlrev_b32 {v}, 13, {v}
        v_lshl_add_u32 {v}, v3, 6, {v}
        v_and_b32 v14, 3, v0
        v_lshl_add_u32 {v}, v14, 4, {v}
        s_lshl_b32 {sT}, {sE}, 16
        s_lshl_b32 {sT2}, {slot}, 7
        s_add_u32 {sT}, {sT}, {sT2}
        s_add_u32 {sT}, {sT}, {WS_H3}""")

    def wave_L(self):
        a, c = self.a, self.c
        self.srd(SRD1, P_CKV, 0x1000000)
        a(f"""s_lshl_b32 {sO}, {sB}, 22
        s_lshl_b32 {sT}, {sSP}, 17
        s_add_u32 {sO}, {sO}, {sT}
        s_mov_b32 m0, {L_CKV}
        s_mov_b32 {sN}, 128
        s_barrier""")
        self.stamp(1)
        a(f"""L_CK:
        buffer_load_dwordx4 v5, s[{SRD1}:{SRD1+3}], {sO} offen nt lds
        s_add_u32 {sO}, {sO}, 1024
        s_add_u32 m0, m0, {RS}
        s_waitcnt vmcnt({c.get('pace', 28)})
        s_sub_u32 {sN}, {sN}, 1
        s_cmp_lg_u32 {sN}, 0
        s_cbranch_scc1 L_CK""")
        self.stamp(2)
        a("s_barrier\ns_waitcnt vmcnt(0)")
        self.stamp(3)
        a("s_barrier")
        self.diag_end(2)
        a("s_endpgm")

    def wave_F(self):
        a, c = self.a, self.c
        R, P, TMP, ACC, AOP, X, G = 64, 128, 192, 208, 240, 248, 16
        a(f"""v_mov_b32 v14, 0
        v_lshlrev_b32 v15, 2, v1
        ds_write_b32 v15, v14 offset:{L_FLG}
        s_waitcnt lgkmcnt(0)
        s_barrier""")
        a(f"""s_cmp_ge_u32 {sFT}, 28
        s_cbranch_scc1 L_END""")
        self.epoch_consts()
        a(f"""v_mov_b32 v12, {sTAG}
        s_cmp_eq_u32 {sH2}, 0
        s_cselect_b64 s[{SRD1}:{SRD1+1}], s[{P_WG}:{P_WG+1}], s[{P_WU}:{P_WU+1}]
        s_mov_b32 s{SRD1+2}, {512*3584}
        s_mov_b32 s{SRD1+3}, 0x20000""")
        self.srd(SRD2, P_WD, 1792*1024)
        a(f"""v_lshlrev_b32 v7, 4, v4
        v_lshl_add_u32 v6, v3, 2, v2
        v_lshl_add_u32 v8, v6, 13, v7
        v_mul_u32_u24 v6, {8*3584}, v6
        v_add_u32 v6, v6, v7
        v_and_b32 v9, 1, v1
        v_lshlrev_b32 v9, 6, v9
        v_lshl_add_u32 v9, v2, 4, v9
        v_lshrrev_b32 v10, 2, v1
        v_mul_u32_u24 v11, {RS}, v10
        s_lshl_b32 {sT}, {sQ4}, 8
        v_add3_u32 v11, v11, v9, {sT}
        v_mul_u32_u24 v10, 144, v10
        v_add_u32 v10, v10, v9
        v_mul_u32_u24 v9, 144, v2
        v_lshl_add_u32 v9, v4, 4, v9
        v_lshl_add_u32 v9, v3, 3, v9
        s_mov_b32 {sSTR}, 3584
        s_mul_i32 {sO}, {sQ4}, {128*3584}
        s_lshl_b32 {sT}, {sFT}, 7
        s_add_u32 {sO}, {sO}, {sT}
        s_barrier""")
        self.stride = 3584
        self.tile_loads(R, "v6", SRD1, list(range(8)))
        a(f"""ds_read_b128 {vr(AOP)}, v11 offset:{L_XN}
        ds_read_b128 {vr(AOP+4)}, v11 offset:{L_XN+128}
        s_barrier
        s_barrier
        s_barrier
        s_waitcnt vmcnt(8) lgkmcnt(0)""")
        self.block_inline(R, AOP, ACC, TMP, True)
        a("s_waitcnt vmcnt(0)")
        self.stamp(1)
        self.block_inline(R+32, AOP+4, ACC, TMP, False)
        a(f"""s_lshl_b32 {sW}, {sFT}, 13
        s_add_u32 {sW}, {sW}, {WS_F}
        s_lshl_b32 {sT}, {sE}, 10
        s_add_u32 {sT}, {sT}, {sW}""")
        self.publish_f32(ACC, X, "v12", "v5", sT)
        self.stamp(2)
        a(f"""s_mov_b32 {sSTR}, 1024
        s_lshl_b32 {sO}, {sFT}, 16
        s_lshl_b32 {sT}, {sE}, 7
        s_add_u32 {sO}, {sO}, {sT}
        s_barrier
        s_barrier""")
        self.stride = 1024
        self.tile_loads(R, "v8", SRD2, list(range(8)), nblk=1)
        a(f"s_mov_b32 {sO}, {sW}")
        def btw():
            a("s_barrier")
            a("s_waitcnt vmcnt(8)")
            self.perm_all(P, R, nblk=1)
        self.group_gather(G, "v12", "v5", between=btw)
        self.stamp(3)
        for k in range(4):
            a(f"v_cvt_pk_bf16_f32 v{G+8+k}, v{G+k}, v{G+4+k}")
        c1 = -2.0 * math.sqrt(2.0 / math.pi) * math.log2(math.e)
        a(f"s_mov_b32 {sT}, {f32(c1 * 0.044715)}\nv_mov_b32 v14, {f32(c1)}")
        for k in range(4):
            a(f"v_lshlrev_b32 v{G+k}, 16, v{G+8+k}\nv_and_b32 v{G+4+k}, 0xffff0000, v{G+8+k}")
        for k in range(4):
            a(f"v_mul_f32 v{G+8+k}, v{G+k}, v{G+k}")
        for k in range(4):
            a(f"v_fma_f32 v{G+8+k}, v{G+8+k}, {sT}, v14")
        for k in range(4):
            a(f"v_mul_f32 v{G+8+k}, v{G+8+k}, v{G+k}")
        for k in range(4):
            a(f"v_exp_f32 v{G+8+k}, v{G+8+k}")
        for k in range(4):
            a(f"v_add_f32 v{G+8+k}, 1.0, v{G+8+k}")
        for k in range(4):
            a(f"v_rcp_f32 v{G+8+k}, v{G+8+k}")
        for k in range(4):
            a(f"v_mul_f32 v{G+k}, v{G+k}, v{G+8+k}")
        a(f"""v_cvt_pk_bf16_f32 v{G+8}, v{G}, v{G+1}
        v_cvt_pk_bf16_f32 v{G+9}, v{G+2}, v{G+3}
        v_lshlrev_b32 v{G}, 16, v{G+8}
        v_and_b32 v{G+1}, 0xffff0000, v{G+8}
        v_lshlrev_b32 v{G+2}, 16, v{G+9}
        v_and_b32 v{G+3}, 0xffff0000, v{G+9}""")
        for k in range(4):
            a(f"v_mul_f32 v{G+k}, v{G+k}, v{G+4+k}")
        a(f"""v_cvt_pk_bf16_f32 v{G}, v{G}, v{G+1}
        v_cvt_pk_bf16_f32 v{G+1}, v{G+2}, v{G+3}
        ds_write_b64 v9, v[{G}:{G+1}] offset:{L_ACTF}
        ds_read_b128 {vr(AOP)}, v10 offset:{L_ACTF}
        s_add_u32 {sW}, {sFT}, 32""")
        self.h3_addr("v13", sW)
        a("s_waitcnt lgkmcnt(0)")
        self.mfma_all(P, AOP, ACC, nblk=1)
        self.publish_f32(ACC, X, "v12", "v13", sT)
        self.stamp(4)
        self.diag_end(1)
        a("s_endpgm")

    def wave_T(self):
        a, c = self.a, self.c
        a(f"""s_sub_u32 {sW}, s3, 3
        s_mul_i32 {sT}, {sW}, {RS}
        v_add_u32 v6, {sT}, v5
        s_barrier""")
        a(f"""ds_read_b128 v[16:19], v6 offset:{L_XN}
        s_waitcnt lgkmcnt(0)""")
        for k in range(4):
            a(f"v_lshlrev_b32 v{20+2*k}, 16, v{16+k}\nv_and_b32 v{21+2*k}, 0xffff0000, v{16+k}")
        a("""v_add_f32 v28, v20, v21
        v_add_f32 v29, v22, v23
        v_add_f32 v30, v24, v25
        v_add_f32 v31, v26, v27
        v_add_f32 v28, v28, v29
        v_add_f32 v30, v30, v31
        v_add_f32 v28, v28, v30""")
        self.wave_reduce("v_add_f32", "v28", sT)
        a(f"v_mov_b32 v29, {f32(1.0/512)}\nv_mul_f32 v29, {sT}, v29")
        a("v_sub_f32 v30, v20, v29\nv_mul_f32 v28, v30, v30")
        for k in range(1, 8):
            a(f"v_sub_f32 v30, v{20+k}, v29\nv_fmac_f32 v28, v30, v30")
        self.wave_reduce("v_add_f32", "v28", sT)
        a(f"""v_mov_b32 v30, {f32(1.0/512)}
        v_mul_f32 v30, {sT}, v30
        v_cvt_pk_bf16_f32 v29, v29, v30
        v_and_b32 v30, 0xffff0000, v29
        v_lshlrev_b32 v29, 16, v29
        v_add_f32 v30, {f32(1e-5)}, v30
        v_cvt_pk_bf16_f32 v30, v30, v30
        v_and_b32 v30, 0xffff0000, v30
        v_sqrt_f32 v30, v30
        v_cvt_pk_bf16_f32 v30, v30, v30
        v_and_b32 v30, 0xffff0000, v30
        v_rcp_f32 v30, v30""")
        for k in range(8):
            a(f"v_sub_f32 v{20+k}, v{20+k}, v29")
        for k in range(4):
            a(f"v_cvt_pk_bf16_f32 v{16+k}, v{20+2*k}, v{21+2*k}")
        for k in range(4):
            a(f"v_lshlrev_b32 v{20+2*k}, 16, v{16+k}\nv_and_b32 v{21+2*k}, 0xffff0000, v{16+k}")
        for k in range(8):
            a(f"v_mul_f32 v{20+k}, v{20+k}, v30")
        for k in range(4):
            a(f"v_cvt_pk_bf16_f32 v{16+k}, v{20+2*k}, v{21+2*k}")
        a(f"ds_write_b128 v6, v[16:19] offset:{L_XN}")
        self.flag_add(0)
        self.stamp(1)
        self.epoch_consts()
        a(f"""s_lshl1_add_u32 {sT}, {sB}, {sHG}
        s_mul_i32 {sT}, {sT}, 24576
        s_add_u32 {sT}, {sT}, {WS_H1}
        s_lshl_b32 {sO}, {sW}, 12
        s_add_u32 {sO}, {sO}, {sT}
        s_lshl_b32 {sO2}, {sW}, 11
        s_add_u32 {sO2}, {sO2}, {sT}
        s_add_u32 {sO2}, {sO2}, 16384
        s_lshl_b32 s75, {sF}, 7
        v_lshrrev_b32 v6, 3, v0
        v_mul_u32_u24 v6, {RS}, v6
        v_lshl_add_u32 v6, v4, 4, v6
        s_lshl_b32 {sT}, {sW}, 8
        v_add_u32 v6, {sT}, v6
        v_mul_u32_u24 v7, {RS}, v1
        v_lshl_add_u32 v7, v2, 4, v7
        s_mov_b32 {sN}, {SPIN}""")
        self.flag_wait(1, 1)
        self.stamp(2)
        G = 16
        L, D = self.lab("h1"), self.lab("h1d")
        a(f"{L}:")
        for n in range(4):
            a(f"buffer_load_dwordx4 {vr(G+4*n)}, v5, s[{SRDW}:{SRDW+3}], {sO} offen offset:{n*1024} sc1")
        for n in range(2):
            a(f"buffer_load_dwordx4 {vr(G+16+4*n)}, v5, s[{SRDW}:{SRDW+3}], {sO2} offen offset:{n*1024} sc1")
        self.sumcheck(G, 6, "v13", post=lambda n: a(f"ds_write_b128 v6, {vr(G+4*n)} offset:{L_QA + (n&1)*8*RS + (n>>1)*128}") if n < 4 else None)
        a(f"""s_cmp_eq_u32 {sT}, s75
        s_cbranch_scc1 {D}
        s_waitcnt lgkmcnt(0)
        s_sub_u32 {sN}, {sN}, 1
        s_cbranch_scc0 {L}
        {D}:""")
        self.stamp(3)
        a("s_waitcnt lgkmcnt(0)\ns_barrier")
        QA = 64
        for kk in range(16):
            a(f"ds_read_b128 {vr(QA+4*kk)}, v7 offset:{L_QA + kk*64}")
            if kk == 11:
                a("s_waitcnt lgkmcnt(4)")
        a(f"""s_mul_i32 {sT}, {sW}, {32*RS}
        s_add_u32 {sT}, {sT}, {L_CKV}
        v_add_u32 v8, {sT}, v7
        v_lshrrev_b32 v9, 2, v0
        v_mul_u32_u24 v9, {RS}, v9
        v_and_b32 v10, 3, v0
        v_lshl_add_u32 v9, v10, 3, v9
        s_lshl_b32 {sT}, {sW}, 8
        s_add_u32 {sT}, {sT}, {L_CKV}
        v_add_u32 v9, {sT}, v9
        v_add_u32 v10, {64*RS}, v9
        v_lshlrev_b32 v11, 4, v1
        v_add_u32 v11, {L_MX}, v11
        s_lshl_b32 {sT}, {sW}, 2
        v_add_u32 v12, {sT}, v11
        v_add_u32 v6, {L_PX}, v5
        s_lshl_b32 {sT}, {sW}, 10
        v_add_u32 v7, {sT}, v6
        s_mov_b32 s50, {f32(128 ** -0.5 * math.log2(math.e))}
        s_waitcnt lgkmcnt(0)
        s_barrier""")
        self.stamp(4)
        AB, SA, V = 32, 16, 128
        steps = [(u, kk) for kk in range(16) for u in range(2)]
        DIST = 6
        def rdS(i):
            u, kk = steps[i]
            a(f"ds_read_b128 {vr(AB+4*(i&7))}, v8 offset:{u*16*RS + kk*64}")
        pv = [(tp, ks, tt) for tp in range(4) for ks in range(4) for tt in range(2)]
        self.vnext = 0
        def rdV(cnt):
            for _ in range(cnt):
                if self.vnext >= 64: return
                i, u = self.vnext >> 1, self.vnext & 1
                tp, ks, tt = pv[i]
                off = (ks & 1) * 32 * RS + u * 16 * RS + (2*tp + tt) * 32
                a(f"ds_read_b64_tr_b16 v[{V+4*i+2*u}:{V+4*i+2*u+1}], {'v10' if ks >= 2 else 'v9'} offset:{off}")
                self.vnext += 1
        for i in range(DIST):
            rdS(i)
        extra = 0
        for i in range(32):
            u, kk = steps[i]
            out = min(DIST - 1, 31 - i) + extra
            a(f"s_waitcnt lgkmcnt({out})")
            a(f"v_mfma_f32_16x16x32_bf16 {vr(SA+4*u)}, {vr(AB+4*(i&7))}, {vr(QA+4*kk)}, {vr(SA+4*u) if kk else '0'}")
            if i + DIST < 32:
                rdS(i + DIST)
            else:
                rdV(2); extra += 2
        a(f"""v_max3_f32 v24, v{SA}, v{SA+1}, v{SA+2}
        v_max3_f32 v25, v{SA+4}, v{SA+5}, v{SA+6}
        v_max3_f32 v24, v24, v{SA+3}, v{SA+7}
        v_max_f32 v24, v24, v25
        v_mov_b32 v25, v24
        v_permlane16_swap_b32 v24, v25
        v_max_f32 v24, v24, v25
        v_mov_b32 v25, v24
        v_permlane32_swap_b32 v24, v25
        v_max_f32 v24, v24, v25
        ds_write_b32 v12, v24""")
        nb = c.get("vbatch", 12)
        rdV(nb)
        a(f"s_waitcnt lgkmcnt({nb})\ns_barrier")
        a("ds_read_b128 v[24:27], v11")
        rdV(nb)
        a(f"""s_waitcnt lgkmcnt({nb})
        v_max3_f32 v24, v24, v25, v26
        v_max_f32 v24, v24, v27
        v_mul_f32 v57, s50, v24""")
        for k in range(8):
            a(f"v_fma_f32 v{SA+k}, v{SA+k}, s50, -v57")
        for k in range(8):
            a(f"v_exp_f32 v{SA+k}, v{SA+k}")
        for k in range(4):
            a(f"v_cvt_pk_bf16_f32 v{28+k}, v{SA+2*k}, v{SA+2*k+1}")
        a(f"""ds_write_b128 v7, v[28:31]
        v_add_f32 v24, v{SA}, v{SA+1}
        v_add_f32 v25, v{SA+2}, v{SA+3}
        v_add_f32 v26, v{SA+4}, v{SA+5}
        v_add_f32 v27, v{SA+6}, v{SA+7}
        v_add_f32 v24, v24, v25
        v_add_f32 v26, v26, v27
        v_add_f32 v24, v24, v26
        v_mov_b32 v25, v24
        v_permlane16_swap_b32 v24, v25
        v_add_f32 v24, v24, v25
        v_mov_b32 v25, v24
        v_permlane32_swap_b32 v24, v25
        v_add_f32 v24, v24, v25
        ds_write_b32 v12, v24 offset:256
        s_waitcnt lgkmcnt(0)
        s_barrier""")
        PF = 64
        for ks in range(4):
            a(f"ds_read_b128 {vr(PF+4*ks)}, v6 offset:{ks*1024}")
        a("ds_read_b128 v[24:27], v11 offset:256")
        have = self.vnext
        pre = min(10, 64 - self.vnext)
        rdV(pre)
        a(f"""v_mul_u32_u24 v12, 327680, v1
        v_lshl_add_u32 v12, v2, 4, v12
        s_lshl2_add_u32 {sT}, {sHG}, {sW}
        s_lshl2_add_u32 {sT}, {sT}, {sB}
        s_mul_i32 {sT}, {sT}, 10240
        s_add_u32 {sT}, {sT}, {WS_H2}
        s_lshl_b32 {sO}, {sSP}, 8
        s_add_u32 {sO}, {sO}, {sT}
        s_lshl_b32 {sO2}, {sSP}, 6
        s_add_u32 {sO2}, {sO2}, {sT}
        s_add_u32 {sO2}, {sO2}, 8192
        s_waitcnt lgkmcnt({pre})
        v_add_f32 v24, v24, v25
        v_add_f32 v26, v26, v27
        v_add_f32 v58, v24, v26
        v_mov_b32 v59, 0
        v_add_u32 v56, v57, v58""")
        self.stamp(5)
        OA, OG = 32, 48
        def epi(tp):
            A0, g = OA + (tp & 1) * 8, OG + (tp & 1) * 4
            ops = [f"v_cvt_pk_bf16_f32 v{g+k}, v{A0+2*k}, v{A0+2*k+1}" for k in range(4)]
            ops += [f"buffer_store_dwordx4 {vr(g)}, v12, s[{SRDW}:{SRDW+3}], {sO} offen offset:{tp*64} sc1",
                    f"v_add3_u32 v56, v56, v{g}, v{g+1}", f"v_add3_u32 v56, v56, v{g+2}, v{g+3}"]
            return ops
        pend = []
        for i in range(32):
            tp, ks, tt = pv[i]
            if 2*i + 2 > have:
                a(f"s_waitcnt lgkmcnt({min(15, self.vnext - (2*i + 2))})")
            A0 = OA + (tp & 1) * 8 + tt * 4
            a(f"v_mfma_f32_16x16x32_bf16 {vr(A0)}, {vr(V+4*i)}, {vr(PF+4*ks)}, {vr(A0) if ks else '0'}")
            if self.vnext - max(have, 2*i + 2) < 12:
                rdV(2)
            if (i & 7) == 3 and tp:
                pend = epi(tp - 1)
            for _ in range(2):
                if pend: a(pend.pop(0))
        assert self.vnext == 64 and not pend
        for o in epi(3):
            a(o)
        a(f"""v_sub_u32 v56, {sF}, v56
        buffer_store_dwordx4 v[56:59], v12, s[{SRDW}:{SRDW+3}], {sO2} offen sc1""")
        self.stamp(6)
        a(f"""s_lshl2_add_u32 {sT}, {sH}, {sQ4}
        s_lshl2_add_u32 {sT}, {sT}, {sW}
        s_mul_i32 {sT}, {sT}, 10240
        s_add_u32 {sO}, {sT}, {WS_H2}
        s_add_u32 {sO2}, {sO}, 8192
        v_lshlrev_b32 v6, 4, v1
        v_lshl_add_u32 v7, v2, 9, v6
        v_lshl_add_u32 v6, v2, 11, v6
        s_mul_i32 {sT}, {sW}, 272
        s_add_u32 {sT}, {sT}, {L_CTX}
        v_add_u32 v8, {sT}, v5
        s_mov_b32 {sN}, {SPIN}
        s_waitcnt vmcnt(0)
        s_barrier""")
        self.stamp(7)
        G, TMP, ACC = 64, 104, 128
        def issue():
            for u in range(2):
                a(f"buffer_load_dwordx4 {vr(G+4*u)}, v7, s[{SRDW}:{SRDW+3}], {sO2} offen offset:{u*256} sc1")
            for n in range(8):
                a(f"buffer_load_dwordx4 {vr(G+8+4*n)}, v6, s[{SRDW}:{SRDW+3}], {sO} offen offset:{n*256} sc1")
        issue()
        a("s_barrier")
        L, D = self.lab("h2"), self.lab("h2d")
        a(f"{L}:")
        self.sumcheck(G, 10, "v13")
        a(f"""s_cmp_eq_u32 {sT}, s75
        s_cbranch_scc1 {D}
        s_sub_u32 {sN}, {sN}, 1
        s_cbranch_scc1 {D}""")
        issue()
        a(f"s_branch {L}\n{D}:")
        self.stamp(8)
        a(f"v_max_f32 v16, v{G+1}, v{G+5}")
        self.wave_reduce("v_max_f32", "v16", sT, full=False)
        a(f"""v_subrev_f32 v16, {sT}, v{G+1}
        v_subrev_f32 v17, {sT}, v{G+5}
        v_exp_f32 v16, v16
        v_exp_f32 v17, v17
        v_cvt_pk_bf16_f32 v18, v16, v17
        v_mov_b32_dpp v19, v18 row_shl:4 row_mask:0xf bank_mask:0x5
        v_lshlrev_b32 v16, 16, v18
        v_and_b32 v17, 0xffff0000, v18
        v_perm_b32 v24, v19, v18, {sPLO}
        v_perm_b32 v25, v19, v18, {sPHI}
        v_mul_f32 v16, v16, v{G+2}
        v_fmac_f32 v16, v17, v{G+6}
        v_mov_b32_dpp v20, v24 row_newbcast:0 row_mask:0xf bank_mask:0xf
        v_mov_b32_dpp v21, v24 row_newbcast:8 row_mask:0xf bank_mask:0xf
        v_mov_b32_dpp v22, v25 row_newbcast:0 row_mask:0xf bank_mask:0xf
        v_mov_b32_dpp v23, v25 row_newbcast:8 row_mask:0xf bank_mask:0xf""")
        self.block_inline(G+8, 20, ACC, TMP, True)
        self.wave_reduce("v_add_f32", "v16", sT, full=False)
        a(f"v_rcp_f32 v16, {sT}")
        for t in range(8):
            a(f"v_mul_f32 v{24+t}, v16, v{ACC+4*t}")
        for k in range(4):
            a(f"v_cvt_pk_bf16_f32 v{20+k}, v{24+2*k}, v{25+2*k}")
        a(f"""s_mov_b64 exec, 0xffff
        ds_write_b128 v8, v[20:23]
        s_waitcnt lgkmcnt(0)
        s_barrier""")
        self.stamp(9)
        self.diag_end(3)

    def sumcheck(self, G, n, vacc, post=None, pre=None):
        a = self.a
        for p in range(n):
            a(f"s_waitcnt vmcnt({n-1-p})")
            if post: post(p)
            if p == 0:
                a(f"v_add_u32 {vacc}, v{G}, v{G+1}")
            else:
                a(f"v_add3_u32 {vacc}, {vacc}, v{G+4*p}, v{G+4*p+1}")
            a(f"v_add3_u32 {vacc}, {vacc}, v{G+4*p+2}, v{G+4*p+3}")
        self.wave_reduce("v_add_u32", vacc, sT)

HEADER = open("cdna_kernels/%s.s.ref" % NAME).read().split("; Override launch")[0]

def generate(cfg):
    k = K(cfg)
    k.build()
    body = k.a.text()
    return f"""{HEADER}; Override launch geometry by editing the next line (default: block=256,
; @launch grid=(256,1,1) block=(448,1,1) lds={L_END}
.amdgcn_target "amdgcn-amd-amdhsa--gfx950"
.text
.globl {NAME}_kernel
.p2align 8
.type {NAME}_kernel,@function
{NAME}_kernel:
{body}.section .rodata,"a"
.p2align 6
.amdhsa_kernel {NAME}_kernel
  .amdhsa_next_free_vgpr 256
  .amdhsa_next_free_sgpr 102
  .amdhsa_accum_offset 256
  .amdhsa_group_segment_fixed_size 0
  .amdhsa_kernarg_size 104
  .amdhsa_user_sgpr_count 2
  .amdhsa_user_sgpr_kernarg_segment_ptr 1
  .amdhsa_system_sgpr_workgroup_id_x 1
.end_amdhsa_kernel
"""

if __name__ == "__main__":
    out = sys.argv[1]
    cfg = {}
    for kv in sys.argv[2:]:
        k, v = kv.split("=")
        cfg[k] = int(v)
    open(out, "w").write(generate(cfg))
```

```python
import sys, math, struct, json
from emit import Asm

NAME = "parallel_sum__compressed_kv_cla__glu_gated_geglu__decode"

def f32(x):
    return "0x%08x" % struct.unpack("<I", struct.pack("<f", x))[0]

WS_Q   = 0x001000
WS_F   = WS_Q + 0x40000
WS_CX  = WS_F + 0x40000
WS_H1  = WS_CX + 0x40000
WS_H3  = WS_H1 + 0x40000
WS_H2  = WS_H3 + 0x80000
WS_DIAG = WS_H2 + 0x500000
WS_SIZE = WS_DIAG + 0x40000
RS = 1056
L_QA = 0
L_XN = L_QA + 16 * RS
L_PX = L_XN + 4 * RS
L_MX = L_PX + 4096
L_LX = L_MX + 256
L_ACTA = L_LX + 256
L_ACTF = L_ACTA + 4 * 272
L_CTX = L_ACTF + 4 * 144
L_FLG = L_CTX + 4 * 272
L_CKV = (L_FLG + 64 + 255) // 256 * 256
L_END = L_CKV + 128 * RS
assert L_END <= 163840

sX, sR, sH, sE, sQ4, sH2, sB, sSP, sHG, sFT = "s34", "s35", "s36", "s37", "s38", "s39", "s40", "s41", "s42", "s43"
sEP, sTAG, sF, sMSK, sPLO, sPHI = "s44", "s45", "s46", "s47", "s48", "s49"
SRD1, SRD2, SRDW, SRD3 = 52, 56, 60, 64
sO, sO2, sT, sT2, sN, sSTR, sW = "s68", "s69", "s70", "s71", "s72", "s73", "s74"
P_X, P_CKV, P_WQ, P_WUK, P_WUV, P_WO, P_WG, P_WU, P_WD, P_OUT, P_WS = 8, 10, 12, 14, 16, 18, 22, 24, 26, 28, 32
SPIN = 4096

def vr(b, n=4):
    return f"v[{b}:{b+n-1}]"

class K:
    def __init__(self, cfg):
        self.c = cfg
        self.a = Asm()
        self.uid = 0
        self.labels = {}
        self.role = None
    def lab(self, s):
        self.uid += 1
        return f"L_{s}_{self.uid}"
    def srd(self, r, p, size):
        self.a(f"""s_mov_b32 s{r}, s{p}
        s_mov_b32 s{r+1}, s{p+1}
        s_mov_b32 s{r+2}, {size}
        s_mov_b32 s{r+3}, 0x20000""")
    def stamp(self, name, lvl=1):
        if self.c.get("diag", 0) & lvl:
            names = self.labels.setdefault(self.role, ["start"])
            k = len(names)
            assert k < 12, name
            names.append(name)
            self.a(f"{'s_memrealtime' if self.c.get('probe') else 's_memtime'} s[{78+2*k}:{79+2*k}]")
    def diag_end(self, w):
        if not self.c.get("diag"):
            return
        a = self.a
        a("s_waitcnt lgkmcnt(0)\ns_mov_b64 exec, -1")
        for k in range(13):
            a(f"v_writelane_b32 v8, s{76+2*k}, {k}")
        a(f"""s_lshl_b32 {sT}, s2, 3
        s_add_u32 {sT}, {sT}, s3
        s_lshl_b32 {sT}, {sT}, 6
        s_add_u32 {sT}, {sT}, {WS_DIAG}
        v_lshlrev_b32 v9, 2, v0
        s_mov_b64 exec, 0xffff
        buffer_store_dword v8, v9, s[{SRDW}:{SRDW+3}], {sT} offen sc1""")
        if self.c.get("dbg") is not None and w == 0:
            L = self.lab("dbg")
            self.srd(SRD1, 30, 256)
            a(f"""s_cmp_lg_u32 s2, {self.c['dbg']}
            s_cbranch_scc1 {L}
            v_subrev_u32 v8, s78, v8
            buffer_store_dword v8, v9, s[{SRD1}:{SRD1+3}], 0 offen
            {L}:""")
    def epoch_consts(self):
        self.a(f"""s_add_u32 {sEP}, {sEP}, 1
        s_and_b32 {sTAG}, {sEP}, 0xff
        s_mul_i32 {sF}, {sEP}, 0x3c6ef362
        s_or_b32 {sF}, {sF}, 1
        s_mov_b32 {sMSK}, 0xffffff00
        s_mov_b32 {sPLO}, 0x05040100
        s_mov_b32 {sPHI}, 0x07060302""")
    def flag_wait(self, idx, val, vt="v14"):
        L = self.lab("fw")
        self.a(f"""v_mov_b32 v15, {L_FLG}
        {L}:
        ds_read_b32 {vt}, v15 offset:{4*idx}
        s_waitcnt lgkmcnt(0)
        v_readfirstlane_b32 {sT}, {vt}
        s_cmp_lt_u32 {sT}, {val}
        s_cbranch_scc1 {L}""")
    def flag_add(self, idx):
        self.a(f"""v_mov_b32 v15, {L_FLG}
        v_mov_b32 v14, 1
        s_mov_b64 exec, 1
        ds_add_u32 v15, v14 offset:{4*idx}
        s_mov_b64 exec, -1""")
    def tile_loads(self, R, voff, srd, rows, nblk=2, blkrows=64):
        a = self.a
        cur = 0
        for be in range(nblk):
            for r in range(8):
                tgt = be * blkrows + rows[r]
                d = tgt - cur
                if d == 1:
                    a(f"s_add_u32 {sO}, {sO}, {sSTR}")
                elif d:
                    a(f"s_add_u32 {sO}, {sO}, {d * self.stride}")
                cur = tgt
                a(f"buffer_load_dwordx4 {vr(R + be*32 + r*4)}, {voff}, s[{srd}:{srd+3}], {sO} offen nt")
    def perm_op(self, dst, R, t):
        for p in range(4):
            lo, hi = R + (2*p)*4 + (t >> 1), R + (2*p+1)*4 + (t >> 1)
            self.a(f"v_perm_b32 v{dst+p}, v{hi}, v{lo}, {sPHI if t & 1 else sPLO}")
    def block_inline(self, R, AOP, ACC, TMP, first):
        self.perm_op(TMP, R, 0)
        for t in range(8):
            if t < 7:
                self.perm_op(TMP + ((t+1) & 3)*4, R, t+1)
            self.a(f"v_mfma_f32_16x16x32_bf16 {vr(ACC+4*t)}, {vr(AOP)}, {vr(TMP+(t&3)*4)}, {'0' if first else vr(ACC+4*t)}")
    def perm_all(self, P, R, nblk=2):
        for be in range(nblk):
            for t in range(8):
                self.perm_op(P + be*32 + t*4, R + be*32, t)
    def mfma_all(self, P, AOP, ACC, nblk=2):
        for be in range(nblk):
            for t in range(8):
                self.a(f"v_mfma_f32_16x16x32_bf16 {vr(ACC+4*t)}, {vr(AOP+4*be)}, {vr(P+be*32+t*4)}, {vr(ACC+4*t) if be else '0'}")
    def publish_f32(self, ACC, X, vtag, voff, soff):
        a = self.a
        for e in range(4):
            a(f"v_add_f32_dpp v{X+e}, v{ACC+4*e+1}, v{ACC+4*e} row_ror:8 row_mask:0xf bank_mask:0x3")
        for e in range(4):
            a(f"v_add_f32_dpp v{X+e}, v{ACC+16+4*e}, v{ACC+16+4*e+1} row_ror:8 row_mask:0xf bank_mask:0xc")
        for e in range(4):
            a(f"v_and_or_b32 v{X+e}, v{X+e}, {sMSK}, {vtag}")
        a(f"buffer_store_dwordx4 {vr(X)}, {voff}, s[{SRDW}:{SRDW+3}], {soff} offen sc1")
    def gather8_issue(self, G, voff, soff, soff2):
        for p in range(8):
            self.a(f"buffer_load_dwordx4 {vr(G+4*p)}, {voff}, s[{SRDW}:{SRDW+3}], {soff if p < 4 else soff2} offen offset:{(p&3)*1024} sc1")
    def tagcheck(self, G, n, vtag, vacc, waits=True):
        a = self.a
        for p in range(n):
            if waits:
                a(f"s_waitcnt vmcnt({n-1-p})")
            for e in range(4):
                if p == 0 and e == 0:
                    a(f"v_xor_b32 {vacc}, v{G}, {vtag}")
                else:
                    a(f"v_bitop3_b32 {vacc}, v{G+4*p+e}, {vacc}, {vtag} bitop3:0xde")
        a(f"""v_and_b32 {vacc}, 0xff, {vacc}
        v_cmp_ne_u32 vcc, 0, {vacc}""")
    def group_gather(self, G, vtag, voff, between=None):
        a = self.a
        L, D = self.lab("gg"), self.lab("ggd")
        a(f"s_add_u32 {sO2}, {sO}, 4096\ns_mov_b32 {sN}, {SPIN}")
        self.gather8_issue(G, voff, sO, sO2)
        if between:
            between()
        a(f"{L}:")
        self.tagcheck(G, 8, vtag, "v13")
        a(f"""s_cbranch_vccz {D}
        s_sub_u32 {sN}, {sN}, 1
        s_cbranch_scc1 {D}""")
        self.gather8_issue(G, voff, sO, sO2)
        a(f"s_branch {L}\n{D}:")
        for k in range(8):
            a(f"v_add_f32 v{G+k}, v{G+k}, v{G+8+k}")
        for k in range(8):
            a(f"v_add_f32 v{G+16+k}, v{G+16+k}, v{G+24+k}")
        for k in range(8):
            a(f"v_add_f32 v{G+k}, v{G+k}, v{G+16+k}")
    def wave_reduce(self, op, v, dst, full=True):
        a = self.a
        steps = (["row_ror:1", "row_ror:2"] if full else []) + ["row_ror:4", "row_ror:8"]
        for s in steps:
            a(f"{op}_dpp {v}, {v}, {v} {s} row_mask:0xf bank_mask:0xf")
        a(f"{op}_dpp {v}, {v}, {v} row_bcast:15 row_mask:0xa bank_mask:0xf")
        a(f"{op}_dpp {v}, {v}, {v} row_bcast:31 row_mask:0xc bank_mask:0xf")
        a(f"v_readlane_b32 {dst}, {v}, 63")

    def build(self):
        a, c = self.a, self.c
        a(f"""s_cmp_ge_u32 s2, 256
        s_cbranch_scc1 L_END
        s_load_dwordx16 s[8:23], s[0:1], 0
        s_load_dwordx8 s[24:31], s[0:1], 64
        s_load_dwordx2 s[32:33], s[0:1], 96""")
        if c.get("diag"):
            a("s_memrealtime s[76:77]\ns_memtime s[78:79]")
        a(f"""v_readfirstlane_b32 s3, v0
        v_and_b32 v0, 63, v0
        s_and_b32 {sX}, s2, 7
        s_lshr_b32 {sR}, s2, 3
        s_lshr_b32 s3, s3, 6
        s_and_b32 {sT}, {sR}, 3
        s_lshl2_add_u32 {sH}, {sX}, {sT}
        s_lshl3_add_u32 {sFT}, {sT}, {sX}
        s_lshr_b32 {sE}, {sR}, 2
        s_lshr_b32 {sQ4}, {sE}, 1
        s_and_b32 {sH2}, {sE}, 1
        v_and_b32 v1, 15, v0
        v_lshrrev_b32 v2, 4, v0
        v_bfe_u32 v3, v0, 3, 1
        v_and_b32 v4, 7, v0
        v_lshlrev_b32 v5, 4, v0
        s_cmp_lg_u32 s3, 0
        s_cbranch_scc1 L_NOTA""")
        self.wave_A()
        a("L_NOTA:")
        a(f"""s_lshr_b32 {sB}, {sX}, 1
        s_and_b32 {sT}, {sX}, 1
        s_lshr_b32 {sSP}, {sR}, 1
        s_lshl4_add_u32 {sSP}, {sT}, {sSP}
        s_and_b32 {sHG}, {sR}, 1
        s_waitcnt lgkmcnt(0)
        s_load_dword {sEP}, s[{P_WS}:{P_WS+1}], 0""")
        self.srd(SRDW, P_WS, WS_SIZE)
        a("""s_cmp_ge_u32 s3, 3
        s_cbranch_scc1 L_WT
        s_cmp_eq_u32 s3, 1
        s_cbranch_scc1 L_WF""")
        self.wave_L()
        a("L_WF:")
        self.wave_F()
        a("L_WT:")
        self.wave_T()
        a("L_END:\ns_endpgm")
        a.raw("L_CODE_END:")

    def wave_A(self):
        self.role = "A"
        a, c = self.a, self.c
        R, P, TMP, ACC, AOP, X, G = 64, 128, 192, 208, 240, 248, 16
        a(f"""s_getpc_b64 s[4:5]
        L_PC:
        s_lshl_b32 {sT}, {sR}, 9
        v_lshl_add_u32 v6, v0, 7, {sT}
        v_min_u32 v6, L_CODE_END-L_PC-4, v6
        s_mov_b64 exec, 15
        global_load_dword v255, v6, s[4:5]
        s_mov_b64 exec, -1
        v_lshl_add_u32 v6, v3, 2, v2
        v_lshlrev_b32 v7, 4, v4
        v_lshl_add_u32 v6, v6, 16, v7
        v_lshlrev_b32 v8, 16, v4
        v_lshl_add_u32 v8, v3, 6, v8
        v_lshl_add_u32 v8, v2, 4, v8
        s_mov_b32 {sSTR}, 8192
        s_lshl_b32 {sO}, {sQ4}, 20
        s_lshl_b32 {sT}, {sH}, 8
        s_lshl_b32 {sT2}, {sH2}, 7
        s_add_u32 {sO2}, {sT}, {sT2}
        s_add_u32 {sO}, {sO}, {sO2}
        s_mov_b32 m0, {L_XN}
        s_mov_b32 s{SRD3+2}, 4096
        s_mov_b32 s{SRD3+3}, 0x20000
        s_mov_b32 s{SRD1+2}, 0x400000
        s_mov_b32 s{SRD1+3}, 0x20000
        s_mov_b32 s{SRD2+2}, 0x400000
        s_mov_b32 s{SRD2+3}, 0x20000
        s_waitcnt lgkmcnt(0)""")
        self.stamp("kernarg", 2)
        a(f"""s_mov_b64 s[{SRD3}:{SRD3+1}], s[{P_X}:{P_X+1}]
        s_mov_b64 s[{SRD1}:{SRD1+1}], s[{P_WQ}:{P_WQ+1}]
        s_mov_b64 s[{SRD2}:{SRD2+1}], s[{P_WUK}:{P_WUK+1}]""")
        for b in range(4):
            a(f"buffer_load_dwordx4 v5, s[{SRD3}:{SRD3+3}], 0 offen offset:{b*1024} lds")
            if b < 3:
                a("s_add_u32 m0, m0, 32")
        self.stride = 8192
        self.stamp("x issued", 2)
        self.tile_loads(R, "v6", SRD1, list(range(8)))
        self.stamp("wq issued", 2)
        a(f"""s_lshl_b32 {sO}, {sE}, 19
        s_add_u32 {sO}, {sO}, {sT}""")
        for t in range(8):
            if t:
                a(f"s_add_u32 {sO}, {sO}, {sSTR}")
            for be in range(2):
                a(f"buffer_load_dwordx4 {vr(P+be*32+t*4)}, v8, s[{SRD2}:{SRD2+3}], {sO} offen offset:{be*128} nt")
        a(f"s_load_dword {sEP}, s[{P_WS}:{P_WS+1}], 0")
        self.stamp("issued", 3)
        a("s_waitcnt vmcnt(32)")
        self.stamp("x landed", 2)
        a("s_barrier")
        self.stamp("Bs", 2)
        self.srd(SRDW, P_WS, WS_SIZE)
        a(f"""v_and_b32 v9, 1, v1
        v_lshlrev_b32 v9, 6, v9
        v_lshl_add_u32 v9, v2, 4, v9
        v_lshrrev_b32 v10, 2, v1
        v_mul_u32_u24 v11, {RS}, v10
        s_lshl_b32 {sT}, {sQ4}, 8
        v_add3_u32 v11, v11, v9, {sT}
        v_mul_u32_u24 v10, 272, v10
        v_add_u32 v10, v10, v9
        v_mul_u32_u24 v9, 272, v2
        v_lshl_add_u32 v9, v4, 4, v9
        v_lshl_add_u32 v9, v3, 3, v9
        s_waitcnt lgkmcnt(0)""")
        self.epoch_consts()
        a(f"v_mov_b32 v12, {sTAG}")
        self.flag_wait(0, 4)
        self.stamp("xn ready", 2)
        a(f"""ds_read_b128 {vr(AOP)}, v11 offset:{L_XN}
        ds_read_b128 {vr(AOP+4)}, v11 offset:{L_XN+128}
        s_waitcnt vmcnt(24) lgkmcnt(0)""")
        self.block_inline(R, AOP, ACC, TMP, True)
        a("s_waitcnt vmcnt(16)")
        self.stamp("wq landed", 3)
        self.block_inline(R+32, AOP+4, ACC, TMP, False)
        a(f"""s_lshl_b32 {sO}, {sH}, 13
        s_add_u32 {sO}, {sO}, {WS_Q}
        s_lshl_b32 {sT}, {sE}, 10
        s_add_u32 {sT}, {sT}, {sO}""")
        self.publish_f32(ACC, X, "v12", "v5", sT)
        self.stamp("Q stored", 2)
        a("s_waitcnt vmcnt(1)")
        self.stamp("wuk landed", 2)
        a("s_waitcnt vmcnt(0)")
        self.stamp("Q acked", 3)
        self.group_gather(G, "v12", "v5")
        self.stamp("Q gathered")
        def to_operand():
            for k in range(4):
                a(f"v_cvt_pk_bf16_f32 v{G+k}, v{G+2*k}, v{G+2*k+1}")
            a(f"""ds_write_b64 v9, v[{G}:{G+1}] offset:{L_ACTA}
            ds_write_b64 v9, v[{G+2}:{G+3}] offset:{L_ACTA+128}
            ds_read_b128 {vr(AOP)}, v10 offset:{L_ACTA}
            ds_read_b128 {vr(AOP+4)}, v10 offset:{L_ACTA+128}
            s_waitcnt lgkmcnt(0)""")
        to_operand()
        self.mfma_all(P, AOP, ACC)
        a(f"""s_and_b32 {sT}, {sH}, 1
        s_mul_i32 {sT}, {sT}, 24576
        s_add_u32 {sO}, {sT}, {WS_H1}
        s_lshr_b32 {sT}, {sH}, 1
        s_lshl4_add_u32 {sT}, {sE}, {sT}
        s_lshl_b32 {sT2}, {sT}, 7
        s_lshl_b32 {sT}, {sT}, 6
        s_add_u32 {sT}, {sT}, 16384
        v_mov_b32 v13, {sT2}
        v_mov_b32 v14, {sT}
        v_mov_b32_dpp v13, v14 quad_perm:[0,1,2,3] row_mask:0xf bank_mask:0xc
        v_mul_u32_u24 v14, 49152, v2
        v_add3_u32 v13, v13, v14, v7
        v_mov_b32 v14, 0""")
        for t in range(8):
            a(f"v_add_f32_dpp v{G+t}, v{ACC+4*t+1}, v{ACC+4*t} row_ror:8 row_mask:0xf bank_mask:0xf")
        for k in range(4):
            a(f"v_cvt_pk_bf16_f32 v{X+k}, v{G+2*k}, v{G+2*k+1}")
        a(f"""v_add3_u32 v{G}, v{X}, v{X+1}, v{X+2}
        v_add_u32 v{G}, v{G}, v{X+3}
        v_mov_b32_dpp v{X+1}, v14 quad_perm:[0,1,2,3] row_mask:0xf bank_mask:0x4
        v_mov_b32_dpp v{X+2}, v14 quad_perm:[0,1,2,3] row_mask:0xf bank_mask:0x4
        v_add_u32_dpp v{G}, v{G}, v{G} row_shl:4 row_mask:0xf bank_mask:0x1
        v_sub_u32 v{G}, {sF}, v{G}
        v_mov_b32_dpp v{X+3}, v14 quad_perm:[0,1,2,3] row_mask:0xf bank_mask:0x4
        v_mov_b32_dpp v{X}, v{G} row_shr:8 row_mask:0xf bank_mask:0x4
        s_mov_b32 exec_lo, 0x0fff0fff
        s_mov_b32 exec_hi, 0x0fff0fff
        buffer_store_dwordx4 {vr(X)}, v13, s[{SRDW}:{SRDW+3}], {sO} offen sc1
        s_mov_b64 exec, -1""")
        self.stamp("H1 stored")
        a("s_waitcnt vmcnt(0)")
        self.flag_add(1)
        a(f"""s_mov_b64 s[{SRD1}:{SRD1+1}], s[{P_WUV}:{P_WUV+1}]
        s_mov_b64 s[{SRD2}:{SRD2+1}], s[{P_WO}:{P_WO+1}]
        v_lshl_add_u32 v8, v3, 3, v2
        v_lshl_add_u32 v8, v8, 15, v7
        s_lshl_b32 {sO}, {sQ4}, 20
        s_lshl_b32 {sT}, {sH}, 8
        s_lshl_b32 {sT2}, {sH2}, 7
        s_add_u32 {sO2}, {sT}, {sT2}
        s_add_u32 {sO}, {sO}, {sO2}
        s_waitcnt lgkmcnt(0)
        s_barrier""")
        if c.get("uv_delay", 1):
            a("s_sleep 4")
        self.tile_loads(R, "v8", SRD1, [0, 1, 2, 3, 16, 17, 18, 19])
        a("s_barrier\ns_barrier\ns_barrier")
        a("s_waitcnt vmcnt(0)")
        self.perm_all(P, R)
        a(f"""v_lshl_add_u32 v8, v3, 2, v2
        v_lshl_add_u32 v8, v8, 13, v7
        s_mov_b32 {sSTR}, 1024
        s_lshl_b32 {sO}, {sH}, 17
        s_lshl_b32 {sT}, {sE}, 7
        s_add_u32 {sO}, {sO}, {sT}
        s_barrier
        s_barrier""")
        self.stride = 1024
        self.tile_loads(R, "v8", SRD2, list(range(8)))
        a(f"""s_bfe_u32 {sT}, s2, 0x20001
        s_lshl_b32 {sT}, {sT}, 10
        s_bfe_u32 {sT2}, s2, 0x30003
        s_lshl_b32 {sT2}, {sT2}, 7
        s_add_u32 {sT}, {sT}, {sT2}
        s_and_b32 {sT2}, s2, 1
        s_lshl_b32 {sT2}, {sT2}, 6
        s_add_u32 {sW}, {sT}, {sT2}
        v_and_b32 v11, 3, v0
        v_lshlrev_b32 v11, 4, v11
        v_bfe_u32 v13, v0, 2, 1
        v_lshl_add_u32 v11, v13, 3, v11
        buffer_load_dwordx2 v[252:253], v11, s[{SRD3}:{SRD3+3}], {sW} offen
        s_barrier""")
        self.stamp("B7")
        a(f"""ds_read_b128 {vr(AOP)}, v10 offset:{L_CTX}
        ds_read_b128 {vr(AOP+4)}, v10 offset:{L_CTX+128}
        s_lshl_b32 {sO}, {sH}, 13
        s_add_u32 {sO}, {sO}, {WS_CX}
        s_lshl_b32 {sT}, {sE}, 10
        s_add_u32 {sT}, {sT}, {sO}
        s_waitcnt lgkmcnt(0)""")
        self.mfma_all(P, AOP, ACC)
        self.publish_f32(ACC, X, "v12", "v5", sT)
        a("s_waitcnt vmcnt(0)")
        self.stamp("CX acked")
        self.group_gather(G, "v12", "v5", between=lambda: self.perm_all(P, R))
        self.stamp("CX gathered")
        to_operand()
        self.mfma_all(P, AOP, ACC)
        self.h3_addr("v13", sH)
        self.publish_f32(ACC, X, "v12", "v13", sT)
        self.stamp("H3 stored")
        a(f"""s_cmp_ge_u32 s2, 64
        s_cbranch_scc1 L_ADONE
        s_lshl_b32 {sO}, s2, 13
        s_add_u32 {sO}, {sO}, {WS_H3}
        s_add_u32 {sO2}, {sO}, 4096
        s_mov_b32 {sN}, {SPIN}
        s_mov_b64 s[{SRD3}:{SRD3+1}], s[{P_OUT}:{P_OUT+1}]""")
        for e in range(4):
            a(f"v_mov_b32 v{G+28+e}, v12")
        a("s_waitcnt vmcnt(0)")
        self.stamp("H3 acked")
        L, D = self.lab("h3"), self.lab("h3d")
        a(f"{L}:")
        for p in range(8):
            if p == 7:
                a("s_mov_b32 exec_hi, 0")
            a(f"buffer_load_dwordx4 {vr(G+4*p)}, v5, s[{SRDW}:{SRDW+3}], {sO if p < 4 else sO2} offen offset:{(p&3)*1024} sc1")
        a("s_mov_b32 exec_hi, -1")
        self.tagcheck(G, 8, "v12", "v13")
        a(f"""s_cbranch_vccz {D}
        s_sub_u32 {sN}, {sN}, 1
        s_cbranch_scc0 {L}
        {D}:""")
        for k in range(16):
            a(f"v_add_f32 v{G+k}, v{G+k}, v{G+16+k}")
        for k in range(8):
            a(f"v_add_f32 v{G+k}, v{G+k}, v{G+8+k}")
        for k in range(4):
            a(f"v_add_f32 v{G+k}, v{G+k}, v{G+4+k}")
        for k in range(4):
            a(f"v_add_f32_dpp v{G+k}, v{G+k}, v{G+k} row_ror:8 row_mask:0xf bank_mask:0xf")
        for sw in ("v_permlane16_swap_b32", "v_permlane32_swap_b32"):
            for k in range(4):
                a(f"v_mov_b32 v{G+4+k}, v{G+k}")
            for k in range(4):
                a(f"{sw} v{G+k}, v{G+4+k}")
            for k in range(4):
                a(f"v_add_f32 v{G+k}, v{G+k}, v{G+4+k}")
        a(f"""v_lshlrev_b32 v{G+4}, 16, v252
        v_and_b32 v{G+5}, 0xffff0000, v252
        v_lshlrev_b32 v{G+6}, 16, v253
        v_and_b32 v{G+7}, 0xffff0000, v253""")
        for k in range(4):
            a(f"v_add_f32 v{G+k}, v{G+k}, v{G+4+k}")
        a(f"""v_cvt_pk_bf16_f32 v{G}, v{G}, v{G+1}
        v_cvt_pk_bf16_f32 v{G+1}, v{G+2}, v{G+3}
        s_mov_b64 exec, 0xff
        buffer_store_dwordx2 v[{G}:{G+1}], v11, s[{SRD3}:{SRD3+3}], {sW} offen
        s_cmp_lg_u32 s2, 0
        s_cbranch_scc1 L_ADONE
        s_mov_b64 exec, 1
        v_mov_b32 v13, {sEP}
        buffer_store_dword v13, v5, s[{SRDW}:{SRDW+3}], 0 offen
        L_ADONE:""")
        self.stamp("end")
        self.diag_end(0)
        if c.get("probe"):
            self.probe()
        a("s_endpgm")

    def probe(self):
        a, c = self.a, self.c
        pw, pk, nw = c.get("pw", 0), c.get("pk", 0), c.get("pn", 256)
        op = "v_max_i32" if c.get("pmax", 1) else "v_min_i32"
        a(f"""s_cmp_lg_u32 s2, 0
        s_cbranch_scc1 L_FX2
        s_mov_b64 exec, -1
        L_FX:
        s_memrealtime s[4:5]
        s_waitcnt lgkmcnt(0)
        s_sub_u32 s4, s4, s76
        s_cmp_lt_u32 s4, 4000
        s_cbranch_scc1 L_FX
        v_lshlrev_b32 v9, 9, v0
        s_mov_b32 {sT}, {WS_DIAG}""")
        for n in range(4):
            a(f"""buffer_load_dword v{16+n}, v9, s[{SRDW}:{SRDW+3}], {sT} offen sc1
            buffer_load_dword v{20+n}, v9, s[{SRDW}:{SRDW+3}], {sT} offen offset:{pw*64 + (4*(1+pk) if pk else 0)} sc1
            s_add_u32 {sT}, {sT}, 32768""")
        a("s_waitcnt vmcnt(0)")
        for n in range(8):
            a(f"v_subrev_u32 v{16+n}, s76, v{16+n}")
        a("v_min_i32 v16, v16, v17\nv_min_i32 v18, v18, v19\nv_min_i32 v16, v16, v18")
        if nw == 256:
            a(f"{op} v20, v20, v21\n{op} v22, v22, v23\n{op} v20, v20, v22")
        self.wave_reduce("v_min_i32", "v16", "s6")
        self.wave_reduce(op, "v20", "s7")
        a("""s_sub_u32 s7, s7, s6
        s_lshl_b32 s7, s7, 4
        s_min_u32 s7, s7, 100000
        s_add_u32 s7, s7, 4200
        L_FX3:
        s_memrealtime s[4:5]
        s_waitcnt lgkmcnt(0)
        s_sub_u32 s4, s4, s76
        s_cmp_lt_u32 s4, s7
        s_cbranch_scc1 L_FX3
        L_FX2:""")

    def h3_addr(self, v, slot):
        self.a(f"""v_bfe_u32 {v}, v0, 2, 1
        v_lshl_add_u32 {v}, v2, 1, {v}
        v_lshlrev_b32 {v}, 13, {v}
        v_lshl_add_u32 {v}, v3, 6, {v}
        v_and_b32 v14, 3, v0
        v_lshl_add_u32 {v}, v14, 4, {v}
        s_lshl_b32 {sT}, {sE}, 16
        s_lshl_b32 {sT2}, {slot}, 7
        s_add_u32 {sT}, {sT}, {sT2}
        s_add_u32 {sT}, {sT}, {WS_H3}""")

    def wave_L(self):
        self.role = "L"
        a, c = self.a, self.c
        self.srd(SRD1, P_CKV, 0x1000000)
        a(f"""s_lshl_b32 {sO}, {sB}, 22
        s_lshl_b32 {sT}, {sSP}, 17
        s_add_u32 {sO}, {sO}, {sT}
        s_mov_b32 m0, {L_CKV}
        s_mov_b32 {sN}, 128
        s_barrier""")
        self.stamp("Bs")
        a(f"""L_CK:
        buffer_load_dwordx4 v5, s[{SRD1}:{SRD1+3}], {sO} offen nt lds
        s_add_u32 {sO}, {sO}, 1024
        s_add_u32 m0, m0, {RS}
        s_waitcnt vmcnt({c.get('pace', 28)})
        s_sub_u32 {sN}, {sN}, 1
        s_cmp_lg_u32 {sN}, 0
        s_cbranch_scc1 L_CK""")
        self.stamp("ckv issued")
        a("s_barrier\ns_waitcnt vmcnt(0)")
        self.stamp("ckv landed")
        a("s_barrier")
        self.diag_end(2)
        a("s_endpgm")

    def wave_F(self):
        self.role = "F"
        a, c = self.a, self.c
        R, P, TMP, ACC, AOP, X, G = 64, 128, 192, 208, 240, 248, 16
        a(f"""v_mov_b32 v14, 0
        v_lshlrev_b32 v15, 2, v1
        ds_write_b32 v15, v14 offset:{L_FLG}
        s_waitcnt lgkmcnt(0)
        s_barrier""")
        a(f"""s_cmp_ge_u32 {sFT}, 28
        s_cbranch_scc1 L_END""")
        self.epoch_consts()
        a(f"""v_mov_b32 v12, {sTAG}
        s_cmp_eq_u32 {sH2}, 0
        s_cselect_b64 s[{SRD1}:{SRD1+1}], s[{P_WG}:{P_WG+1}], s[{P_WU}:{P_WU+1}]
        s_mov_b32 s{SRD1+2}, {512*3584}
        s_mov_b32 s{SRD1+3}, 0x20000""")
        self.srd(SRD2, P_WD, 1792*1024)
        a(f"""v_lshlrev_b32 v7, 4, v4
        v_lshl_add_u32 v6, v3, 2, v2
        v_lshl_add_u32 v8, v6, 13, v7
        v_mul_u32_u24 v6, {8*3584}, v6
        v_add_u32 v6, v6, v7
        v_and_b32 v9, 1, v1
        v_lshlrev_b32 v9, 6, v9
        v_lshl_add_u32 v9, v2, 4, v9
        v_lshrrev_b32 v10, 2, v1
        v_mul_u32_u24 v11, {RS}, v10
        s_lshl_b32 {sT}, {sQ4}, 8
        v_add3_u32 v11, v11, v9, {sT}
        v_mul_u32_u24 v10, 144, v10
        v_add_u32 v10, v10, v9
        v_mul_u32_u24 v9, 144, v2
        v_lshl_add_u32 v9, v4, 4, v9
        v_lshl_add_u32 v9, v3, 3, v9
        s_mov_b32 {sSTR}, 3584
        s_mul_i32 {sO}, {sQ4}, {128*3584}
        s_lshl_b32 {sT}, {sFT}, 7
        s_add_u32 {sO}, {sO}, {sT}
        s_barrier""")
        self.stride = 3584
        self.tile_loads(R, "v6", SRD1, list(range(8)))
        a(f"""ds_read_b128 {vr(AOP)}, v11 offset:{L_XN}
        ds_read_b128 {vr(AOP+4)}, v11 offset:{L_XN+128}
        s_barrier
        s_barrier
        s_barrier
        s_waitcnt vmcnt(8) lgkmcnt(0)""")
        self.block_inline(R, AOP, ACC, TMP, True)
        a("s_waitcnt vmcnt(0)")
        self.stamp("gu landed")
        self.block_inline(R+32, AOP+4, ACC, TMP, False)
        a(f"""s_lshl_b32 {sW}, {sFT}, 13
        s_add_u32 {sW}, {sW}, {WS_F}
        s_lshl_b32 {sT}, {sE}, 10
        s_add_u32 {sT}, {sT}, {sW}""")
        self.publish_f32(ACC, X, "v12", "v5", sT)
        self.stamp("F stored")
        a(f"""s_mov_b32 {sSTR}, 1024
        s_lshl_b32 {sO}, {sFT}, 16
        s_lshl_b32 {sT}, {sE}, 7
        s_add_u32 {sO}, {sO}, {sT}
        s_barrier
        s_barrier""")
        self.stride = 1024
        self.tile_loads(R, "v8", SRD2, list(range(8)), nblk=1)
        a(f"s_mov_b32 {sO}, {sW}")
        def btw():
            a("s_barrier")
            a("s_waitcnt vmcnt(8)")
            self.perm_all(P, R, nblk=1)
        self.group_gather(G, "v12", "v5", between=btw)
        self.stamp("F gathered")
        for k in range(4):
            a(f"v_cvt_pk_bf16_f32 v{G+8+k}, v{G+k}, v{G+4+k}")
        c1 = -2.0 * math.sqrt(2.0 / math.pi) * math.log2(math.e)
        a(f"s_mov_b32 {sT}, {f32(c1 * 0.044715)}\nv_mov_b32 v14, {f32(c1)}")
        for k in range(4):
            a(f"v_lshlrev_b32 v{G+k}, 16, v{G+8+k}\nv_and_b32 v{G+4+k}, 0xffff0000, v{G+8+k}")
        for k in range(4):
            a(f"v_mul_f32 v{G+8+k}, v{G+k}, v{G+k}")
        for k in range(4):
            a(f"v_fma_f32 v{G+8+k}, v{G+8+k}, {sT}, v14")
        for k in range(4):
            a(f"v_mul_f32 v{G+8+k}, v{G+8+k}, v{G+k}")
        for k in range(4):
            a(f"v_exp_f32 v{G+8+k}, v{G+8+k}")
        for k in range(4):
            a(f"v_add_f32 v{G+8+k}, 1.0, v{G+8+k}")
        for k in range(4):
            a(f"v_rcp_f32 v{G+8+k}, v{G+8+k}")
        for k in range(4):
            a(f"v_mul_f32 v{G+k}, v{G+k}, v{G+8+k}")
        a(f"""v_cvt_pk_bf16_f32 v{G+8}, v{G}, v{G+1}
        v_cvt_pk_bf16_f32 v{G+9}, v{G+2}, v{G+3}
        v_lshlrev_b32 v{G}, 16, v{G+8}
        v_and_b32 v{G+1}, 0xffff0000, v{G+8}
        v_lshlrev_b32 v{G+2}, 16, v{G+9}
        v_and_b32 v{G+3}, 0xffff0000, v{G+9}""")
        for k in range(4):
            a(f"v_mul_f32 v{G+k}, v{G+k}, v{G+4+k}")
        a(f"""v_cvt_pk_bf16_f32 v{G}, v{G}, v{G+1}
        v_cvt_pk_bf16_f32 v{G+1}, v{G+2}, v{G+3}
        ds_write_b64 v9, v[{G}:{G+1}] offset:{L_ACTF}
        ds_read_b128 {vr(AOP)}, v10 offset:{L_ACTF}
        s_add_u32 {sW}, {sFT}, 32""")
        self.h3_addr("v13", sW)
        a("s_waitcnt lgkmcnt(0)")
        self.mfma_all(P, AOP, ACC, nblk=1)
        self.publish_f32(ACC, X, "v12", "v13", sT)
        self.stamp("H3 stored")
        self.diag_end(1)
        a("s_endpgm")

    def wave_T(self):
        self.role = "T"
        a, c = self.a, self.c
        a(f"""s_sub_u32 {sW}, s3, 3
        s_mul_i32 {sT}, {sW}, {RS}
        v_add_u32 v6, {sT}, v5
        s_barrier""")
        a(f"""ds_read_b128 v[16:19], v6 offset:{L_XN}
        s_waitcnt lgkmcnt(0)""")
        for k in range(4):
            a(f"v_lshlrev_b32 v{20+2*k}, 16, v{16+k}\nv_and_b32 v{21+2*k}, 0xffff0000, v{16+k}")
        a("""v_add_f32 v28, v20, v21
        v_add_f32 v29, v22, v23
        v_add_f32 v30, v24, v25
        v_add_f32 v31, v26, v27
        v_add_f32 v28, v28, v29
        v_add_f32 v30, v30, v31
        v_add_f32 v28, v28, v30""")
        self.wave_reduce("v_add_f32", "v28", sT)
        a(f"v_mov_b32 v29, {f32(1.0/512)}\nv_mul_f32 v29, {sT}, v29")
        a("v_sub_f32 v30, v20, v29\nv_mul_f32 v28, v30, v30")
        for k in range(1, 8):
            a(f"v_sub_f32 v30, v{20+k}, v29\nv_fmac_f32 v28, v30, v30")
        self.wave_reduce("v_add_f32", "v28", sT)
        a(f"""v_mov_b32 v30, {f32(1.0/512)}
        v_mul_f32 v30, {sT}, v30
        v_cvt_pk_bf16_f32 v29, v29, v30
        v_and_b32 v30, 0xffff0000, v29
        v_lshlrev_b32 v29, 16, v29
        v_add_f32 v30, {f32(1e-5)}, v30
        v_cvt_pk_bf16_f32 v30, v30, v30
        v_and_b32 v30, 0xffff0000, v30
        v_sqrt_f32 v30, v30
        v_cvt_pk_bf16_f32 v30, v30, v30
        v_and_b32 v30, 0xffff0000, v30
        v_rcp_f32 v30, v30""")
        for k in range(8):
            a(f"v_sub_f32 v{20+k}, v{20+k}, v29")
        for k in range(4):
            a(f"v_cvt_pk_bf16_f32 v{16+k}, v{20+2*k}, v{21+2*k}")
        for k in range(4):
            a(f"v_lshlrev_b32 v{20+2*k}, 16, v{16+k}\nv_and_b32 v{21+2*k}, 0xffff0000, v{16+k}")
        for k in range(8):
            a(f"v_mul_f32 v{20+k}, v{20+k}, v30")
        for k in range(4):
            a(f"v_cvt_pk_bf16_f32 v{16+k}, v{20+2*k}, v{21+2*k}")
        a(f"ds_write_b128 v6, v[16:19] offset:{L_XN}")
        self.flag_add(0)
        self.stamp("LN done")
        self.epoch_consts()
        a(f"""s_lshl1_add_u32 {sT}, {sB}, {sHG}
        s_mul_i32 {sT}, {sT}, 24576
        s_add_u32 {sT}, {sT}, {WS_H1}
        s_lshl_b32 {sO}, {sW}, 12
        s_add_u32 {sO}, {sO}, {sT}
        s_lshl_b32 {sO2}, {sW}, 11
        s_add_u32 {sO2}, {sO2}, {sT}
        s_add_u32 {sO2}, {sO2}, 16384
        s_lshl_b32 s75, {sF}, 7
        v_lshrrev_b32 v6, 3, v0
        v_mul_u32_u24 v6, {RS}, v6
        v_lshl_add_u32 v6, v4, 4, v6
        s_lshl_b32 {sT}, {sW}, 8
        v_add_u32 v6, {sT}, v6
        v_mul_u32_u24 v7, {RS}, v1
        v_lshl_add_u32 v7, v2, 4, v7
        s_mov_b32 {sN}, {SPIN}""")
        self.flag_wait(1, 1)
        self.stamp("H1 go")
        G = 16
        L, D = self.lab("h1"), self.lab("h1d")
        a(f"{L}:")
        for n in range(4):
            a(f"buffer_load_dwordx4 {vr(G+4*n)}, v5, s[{SRDW}:{SRDW+3}], {sO} offen offset:{n*1024} sc1")
        for n in range(2):
            a(f"buffer_load_dwordx4 {vr(G+16+4*n)}, v5, s[{SRDW}:{SRDW+3}], {sO2} offen offset:{n*1024} sc1")
        self.sumcheck(G, 6, "v13", post=lambda n: a(f"ds_write_b128 v6, {vr(G+4*n)} offset:{L_QA + (n&1)*8*RS + (n>>1)*128}") if n < 4 else None)
        a(f"""s_cmp_eq_u32 {sT}, s75
        s_cbranch_scc1 {D}
        s_waitcnt lgkmcnt(0)
        s_sub_u32 {sN}, {sN}, 1
        s_cbranch_scc0 {L}
        {D}:""")
        self.stamp("H1 gathered")
        a("s_waitcnt lgkmcnt(0)\ns_barrier")
        QA = 64
        for kk in range(16):
            a(f"ds_read_b128 {vr(QA+4*kk)}, v7 offset:{L_QA + kk*64}")
            if kk == 11:
                a("s_waitcnt lgkmcnt(4)")
        a(f"""s_mul_i32 {sT}, {sW}, {32*RS}
        s_add_u32 {sT}, {sT}, {L_CKV}
        v_add_u32 v8, {sT}, v7
        v_lshrrev_b32 v9, 2, v0
        v_mul_u32_u24 v9, {RS}, v9
        v_and_b32 v10, 3, v0
        v_lshl_add_u32 v9, v10, 3, v9
        s_lshl_b32 {sT}, {sW}, 8
        s_add_u32 {sT}, {sT}, {L_CKV}
        v_add_u32 v9, {sT}, v9
        v_add_u32 v10, {64*RS}, v9
        v_lshlrev_b32 v11, 4, v1
        v_add_u32 v11, {L_MX}, v11
        s_lshl_b32 {sT}, {sW}, 2
        v_add_u32 v12, {sT}, v11
        v_add_u32 v6, {L_PX}, v5
        s_lshl_b32 {sT}, {sW}, 10
        v_add_u32 v7, {sT}, v6
        s_mov_b32 s50, {f32(128 ** -0.5 * math.log2(math.e))}
        s_waitcnt lgkmcnt(0)
        s_barrier""")
        self.stamp("B2")
        AB, SA, V = 32, 16, 128
        steps = [(u, kk) for kk in range(16) for u in range(2)]
        DIST = 6
        def rdS(i):
            u, kk = steps[i]
            a(f"ds_read_b128 {vr(AB+4*(i&7))}, v8 offset:{u*16*RS + kk*64}")
        pv = [(tp, ks, tt) for tp in range(4) for ks in range(4) for tt in range(2)]
        self.vnext = 0
        def rdV(cnt):
            for _ in range(cnt):
                if self.vnext >= 64: return
                i, u = self.vnext >> 1, self.vnext & 1
                tp, ks, tt = pv[i]
                off = (ks & 1) * 32 * RS + u * 16 * RS + (2*tp + tt) * 32
                a(f"ds_read_b64_tr_b16 v[{V+4*i+2*u}:{V+4*i+2*u+1}], {'v10' if ks >= 2 else 'v9'} offset:{off}")
                self.vnext += 1
        for i in range(DIST):
            rdS(i)
        extra = 0
        for i in range(32):
            u, kk = steps[i]
            out = min(DIST - 1, 31 - i) + extra
            a(f"s_waitcnt lgkmcnt({out})")
            a(f"v_mfma_f32_16x16x32_bf16 {vr(SA+4*u)}, {vr(AB+4*(i&7))}, {vr(QA+4*kk)}, {vr(SA+4*u) if kk else '0'}")
            if i + DIST < 32:
                rdS(i + DIST)
            else:
                rdV(2); extra += 2
        a(f"""v_max3_f32 v24, v{SA}, v{SA+1}, v{SA+2}
        v_max3_f32 v25, v{SA+4}, v{SA+5}, v{SA+6}
        v_max3_f32 v24, v24, v{SA+3}, v{SA+7}
        v_max_f32 v24, v24, v25
        v_mov_b32 v25, v24
        v_permlane16_swap_b32 v24, v25
        v_max_f32 v24, v24, v25
        v_mov_b32 v25, v24
        v_permlane32_swap_b32 v24, v25
        v_max_f32 v24, v24, v25
        ds_write_b32 v12, v24""")
        nb = c.get("vbatch", 12)
        rdV(nb)
        a(f"s_waitcnt lgkmcnt({nb})\ns_barrier")
        a("ds_read_b128 v[24:27], v11")
        rdV(nb)
        a(f"""s_waitcnt lgkmcnt({nb})
        v_max3_f32 v24, v24, v25, v26
        v_max_f32 v24, v24, v27
        v_mul_f32 v57, s50, v24""")
        for k in range(8):
            a(f"v_fma_f32 v{SA+k}, v{SA+k}, s50, -v57")
        for k in range(8):
            a(f"v_exp_f32 v{SA+k}, v{SA+k}")
        for k in range(4):
            a(f"v_cvt_pk_bf16_f32 v{28+k}, v{SA+2*k}, v{SA+2*k+1}")
        a(f"""ds_write_b128 v7, v[28:31]
        v_add_f32 v24, v{SA}, v{SA+1}
        v_add_f32 v25, v{SA+2}, v{SA+3}
        v_add_f32 v26, v{SA+4}, v{SA+5}
        v_add_f32 v27, v{SA+6}, v{SA+7}
        v_add_f32 v24, v24, v25
        v_add_f32 v26, v26, v27
        v_add_f32 v24, v24, v26
        v_mov_b32 v25, v24
        v_permlane16_swap_b32 v24, v25
        v_add_f32 v24, v24, v25
        v_mov_b32 v25, v24
        v_permlane32_swap_b32 v24, v25
        v_add_f32 v24, v24, v25
        ds_write_b32 v12, v24 offset:256
        s_waitcnt lgkmcnt(0)
        s_barrier""")
        PF = 64
        for ks in range(4):
            a(f"ds_read_b128 {vr(PF+4*ks)}, v6 offset:{ks*1024}")
        a("ds_read_b128 v[24:27], v11 offset:256")
        have = self.vnext
        pre = min(10, 64 - self.vnext)
        rdV(pre)
        a(f"""v_mul_u32_u24 v12, 327680, v1
        v_lshl_add_u32 v12, v2, 4, v12
        s_lshl2_add_u32 {sT}, {sHG}, {sW}
        s_lshl2_add_u32 {sT}, {sT}, {sB}
        s_mul_i32 {sT}, {sT}, 10240
        s_add_u32 {sT}, {sT}, {WS_H2}
        s_lshl_b32 {sO}, {sSP}, 8
        s_add_u32 {sO}, {sO}, {sT}
        s_lshl_b32 {sO2}, {sSP}, 6
        s_add_u32 {sO2}, {sO2}, {sT}
        s_add_u32 {sO2}, {sO2}, 8192
        s_waitcnt lgkmcnt({pre})
        v_add_f32 v24, v24, v25
        v_add_f32 v26, v26, v27
        v_add_f32 v58, v24, v26
        v_mov_b32 v59, 0
        v_add_u32 v56, v57, v58""")
        self.stamp("PV start")
        OA, OG = 32, 48
        def epi(tp):
            A0, g = OA + (tp & 1) * 8, OG + (tp & 1) * 4
            ops = [f"v_cvt_pk_bf16_f32 v{g+k}, v{A0+2*k}, v{A0+2*k+1}" for k in range(4)]
            ops += [f"buffer_store_dwordx4 {vr(g)}, v12, s[{SRDW}:{SRDW+3}], {sO} offen offset:{tp*64} sc1",
                    f"v_add3_u32 v56, v56, v{g}, v{g+1}", f"v_add3_u32 v56, v56, v{g+2}, v{g+3}"]
            return ops
        pend = []
        for i in range(32):
            tp, ks, tt = pv[i]
            if 2*i + 2 > have:
                a(f"s_waitcnt lgkmcnt({min(15, self.vnext - (2*i + 2))})")
            A0 = OA + (tp & 1) * 8 + tt * 4
            a(f"v_mfma_f32_16x16x32_bf16 {vr(A0)}, {vr(V+4*i)}, {vr(PF+4*ks)}, {vr(A0) if ks else '0'}")
            if self.vnext - max(have, 2*i + 2) < 12:
                rdV(2)
            if (i & 7) == 3 and tp:
                pend = epi(tp - 1)
            for _ in range(2):
                if pend: a(pend.pop(0))
        assert self.vnext == 64 and not pend
        for o in epi(3):
            a(o)
        a(f"""v_sub_u32 v56, {sF}, v56
        buffer_store_dwordx4 v[56:59], v12, s[{SRDW}:{SRDW+3}], {sO2} offen sc1""")
        self.stamp("H2 stored")
        a(f"""s_lshl2_add_u32 {sT}, {sH}, {sQ4}
        s_lshl2_add_u32 {sT}, {sT}, {sW}
        s_mul_i32 {sT}, {sT}, 10240
        s_add_u32 {sO}, {sT}, {WS_H2}
        s_add_u32 {sO2}, {sO}, 8192
        v_lshlrev_b32 v6, 4, v1
        v_lshl_add_u32 v7, v2, 9, v6
        v_lshl_add_u32 v6, v2, 11, v6
        s_mul_i32 {sT}, {sW}, 272
        s_add_u32 {sT}, {sT}, {L_CTX}
        v_add_u32 v8, {sT}, v5
        s_mov_b32 {sN}, {SPIN}
        s_waitcnt vmcnt(0)
        s_barrier""")
        self.stamp("B5")
        G, TMP, ACC = 64, 104, 128
        def issue():
            for u in range(2):
                a(f"buffer_load_dwordx4 {vr(G+4*u)}, v7, s[{SRDW}:{SRDW+3}], {sO2} offen offset:{u*256} sc1")
            for n in range(8):
                a(f"buffer_load_dwordx4 {vr(G+8+4*n)}, v6, s[{SRDW}:{SRDW+3}], {sO} offen offset:{n*256} sc1")
        issue()
        a("s_barrier")
        L, D = self.lab("h2"), self.lab("h2d")
        a(f"{L}:")
        self.sumcheck(G, 10, "v13")
        a(f"""s_cmp_eq_u32 {sT}, s75
        s_cbranch_scc1 {D}
        s_sub_u32 {sN}, {sN}, 1
        s_cbranch_scc1 {D}""")
        issue()
        a(f"s_branch {L}\n{D}:")
        self.stamp("H2 gathered")
        a(f"v_max_f32 v16, v{G+1}, v{G+5}")
        self.wave_reduce("v_max_f32", "v16", sT, full=False)
        a(f"""v_subrev_f32 v16, {sT}, v{G+1}
        v_subrev_f32 v17, {sT}, v{G+5}
        v_exp_f32 v16, v16
        v_exp_f32 v17, v17
        v_cvt_pk_bf16_f32 v18, v16, v17
        v_mov_b32_dpp v19, v18 row_shl:4 row_mask:0xf bank_mask:0x5
        v_lshlrev_b32 v16, 16, v18
        v_and_b32 v17, 0xffff0000, v18
        v_perm_b32 v24, v19, v18, {sPLO}
        v_perm_b32 v25, v19, v18, {sPHI}
        v_mul_f32 v16, v16, v{G+2}
        v_fmac_f32 v16, v17, v{G+6}
        v_mov_b32_dpp v20, v24 row_newbcast:0 row_mask:0xf bank_mask:0xf
        v_mov_b32_dpp v21, v24 row_newbcast:8 row_mask:0xf bank_mask:0xf
        v_mov_b32_dpp v22, v25 row_newbcast:0 row_mask:0xf bank_mask:0xf
        v_mov_b32_dpp v23, v25 row_newbcast:8 row_mask:0xf bank_mask:0xf""")
        self.block_inline(G+8, 20, ACC, TMP, True)
        self.wave_reduce("v_add_f32", "v16", sT, full=False)
        a(f"v_rcp_f32 v16, {sT}")
        for t in range(8):
            a(f"v_mul_f32 v{24+t}, v16, v{ACC+4*t}")
        for k in range(4):
            a(f"v_cvt_pk_bf16_f32 v{20+k}, v{24+2*k}, v{25+2*k}")
        a(f"""s_mov_b64 exec, 0xffff
        ds_write_b128 v8, v[20:23]
        s_waitcnt lgkmcnt(0)
        s_barrier""")
        self.stamp("B7")
        self.diag_end(3)

    def sumcheck(self, G, n, vacc, post=None, pre=None):
        a = self.a
        for p in range(n):
            a(f"s_waitcnt vmcnt({n-1-p})")
            if post: post(p)
            if p == 0:
                a(f"v_add_u32 {vacc}, v{G}, v{G+1}")
            else:
                a(f"v_add3_u32 {vacc}, {vacc}, v{G+4*p}, v{G+4*p+1}")
            a(f"v_add3_u32 {vacc}, {vacc}, v{G+4*p+2}, v{G+4*p+3}")
        self.wave_reduce("v_add_u32", vacc, sT)

HEADER = open("cdna_kernels/%s.s.ref" % NAME).read().split("; Override launch")[0]

def generate(cfg):
    k = K(cfg)
    k.build()
    body = k.a.text()
    if k.labels:
        body = "; LABELS " + json.dumps(k.labels) + "\n" + body
    return f"""{HEADER}; Override launch geometry by editing the next line (default: block=256,
; @launch grid=(256,1,1) block=(448,1,1) lds={L_END}
.amdgcn_target "amdgcn-amd-amdhsa--gfx950"
.text
.globl {NAME}_kernel
.p2align 8
.type {NAME}_kernel,@function
{NAME}_kernel:
{body}.section .rodata,"a"
.p2align 6
.amdhsa_kernel {NAME}_kernel
  .amdhsa_next_free_vgpr 256
  .amdhsa_next_free_sgpr 102
  .amdhsa_accum_offset 256
  .amdhsa_group_segment_fixed_size 0
  .amdhsa_kernarg_size 104
  .amdhsa_user_sgpr_count 2
  .amdhsa_user_sgpr_kernarg_segment_ptr 1
  .amdhsa_system_sgpr_workgroup_id_x 1
.end_amdhsa_kernel
"""

if __name__ == "__main__":
    out = sys.argv[1]
    cfg = {}
    for kv in sys.argv[2:]:
        k, v = kv.split("=")
        cfg[k] = int(v)
    open(out, "w").write(generate(cfg))
```
